```python
import torch

def _softmax(x, axis=-1):
    return torch.softmax(x, dim=axis)
def _gelu(x):
    return torch.nn.functional.gelu(x, approximate="tanh")
def _silu(x):
    return torch.nn.functional.silu(x)
def _sigmoid(x):
    return torch.sigmoid(x)
def _layernorm(x, axis=-1, eps=1e-5):
    m = x.mean(dim=axis, keepdim=True)
    v = x.var(dim=axis, keepdim=True, unbiased=False)
    return (x - m) / torch.sqrt(v + eps)
def _scatter_add(tgt, idx, src, axis=0):
    return tgt.clone().index_add_(axis, idx, src)
def _segment_sum(src, seg, n):
    out = torch.zeros((n,) + src.shape[1:], dtype=src.dtype)
    return out.index_add_(0, seg, src)
def _pad(x, pw):
    flat = tuple(v for pair in reversed(pw) for v in pair)
    return torch.nn.functional.pad(x, flat)

kernel_name = 'gated_mix__linear_kernel_hedgehog__grouped_kv_mqa__prompt'

def setup_inputs():

    _w = (lambda a: (lambda t: t.to(torch.bfloat16) if t.is_floating_point() else t)(torch.as_tensor(a)))
    def _A_setup():
        B, S, D, H = 1, 2048, 448, 16
        Dh = D // H
        return {
            "x": _w((lambda *s: torch.randn(*s, dtype=torch.bfloat16) * 0.05)(B, S, D)),
            "wqkv": _w((lambda *s: torch.randn(*s, dtype=torch.bfloat16) * 1.6)(D, 3 * D)),
            "w_phi": _w((lambda *s: torch.randn(*s, dtype=torch.bfloat16) * 1.6)(H, Dh, Dh) * (Dh ** -0.5)),
            "wo": _w((lambda *s: torch.randn(*s, dtype=torch.bfloat16) * 0.05)(D, D)),
        }
    _A_in = _A_setup()

    def _B_setup():
        B, S, D, H = 1, 2048, 448, 16
        Dh = D // H
        return {
            "x": _w((lambda *s: torch.randn(*s, dtype=torch.bfloat16) * 0.05)(B, S, D)),
            "wq": _w((lambda *s: torch.randn(*s, dtype=torch.bfloat16) * 1.6)(D, H * Dh)),
            "wk": _w((lambda *s: torch.randn(*s, dtype=torch.bfloat16) * 1.6)(D, Dh)),
            "wv": _w((lambda *s: torch.randn(*s, dtype=torch.bfloat16) * 0.05)(D, Dh)),
            "wo": _w((lambda *s: torch.randn(*s, dtype=torch.bfloat16) * 0.05)(H * Dh, D)),
        }
    _B_in = _B_setup()

    return {
        "A_x": _A_in["x"],
        "A_wqkv": _A_in["wqkv"],
        "A_w_phi": _A_in["w_phi"],
        "A_wo": _A_in["wo"],
        "B_x": _B_in["x"],
        "B_wq": _B_in["wq"],
        "B_wk": _B_in["wk"],
        "B_wv": _B_in["wv"],
        "B_wo": _B_in["wo"],
        "gate_w": _w((lambda *s: torch.randn(*s, dtype=torch.bfloat16) * 0.05)(448) * 16.0),
    }

def reference(A_x, A_wqkv, A_w_phi, A_wo, B_x, B_wq, B_wk, B_wv, B_wo, gate_w):
    def _A_ref(x, wqkv, w_phi, wo):
        B, S, D = x.shape
        H = 16; Dh = D // H
        qkv = (lambda x, *d: x.permute(*d))((x @ wqkv).reshape(B, S, 3, H, Dh), 2, 0, 3, 1, 4)
        q, k, v = qkv[0], qkv[1], qkv[2]
        pq = torch.einsum("bhsd,hdf->bhsf", q, w_phi)
        pk = torch.einsum("bhsd,hdf->bhsf", k, w_phi)
        phi_q = torch.concatenate([_softmax(pq, axis=-1), _softmax(-pq, axis=-1)], axis=-1)
        phi_k = torch.concatenate([_softmax(pk, axis=-1), _softmax(-pk, axis=-1)], axis=-1)
        kv = torch.einsum("bhsf,bhsd->bhfd", phi_k, v)
        z  = torch.einsum("bhsf->bhf", phi_k)
        num = torch.einsum("bhqf,bhfd->bhqd", phi_q, kv)
        den = torch.einsum("bhqf,bhf->bhq", phi_q, z)[..., None] + 1e-6
        o = num / den
        return (lambda x, *d: x.permute(*d))(o, 0, 2, 1, 3).reshape(B, S, D) @ wo

    def _B_ref(x, wq, wk, wv, wo):
        B, S, D = x.shape
        H = 16
        Dh = D // H
        q = (lambda x, *d: x.permute(*d))((x @ wq).reshape(B, S, H, Dh), 0, 2, 1, 3)
        k = x @ wk
        v = x @ wv
        scores = torch.einsum("bhqd,bkd->bhqk", q, k) * (Dh ** -0.5)
        p = _softmax(scores, axis=-1)
        o = torch.einsum("bhqk,bkd->bhqd", p, v)
        return (lambda x, *d: x.permute(*d))(o, 0, 2, 1, 3).reshape(B, S, H * Dh) @ wo

    x = A_x
    g = _sigmoid((x * gate_w).sum(-1, keepdims=True))
    a = _A_ref(x, A_wqkv, A_w_phi, A_wo)
    b = _B_ref(x, B_wq, B_wk, B_wv, B_wo)
    return g * a + (1 - g) * b
```

```python
import re

TRANS = ("v_exp_", "v_log_", "v_rcp_", "v_rsq_", "v_sqrt_", "v_sin_", "v_cos_")

def _regs(tok):
    tok = tok.strip()
    tok = re.sub(r"^-", "", tok)
    m = re.match(r"^(?:abs|neg)\((.*)\)$", tok)
    if m: tok = m.group(1)
    tok = tok.strip("|")
    m = re.match(r"^([vas])\[(\d+):(\d+)\]$", tok)
    if m: return {(m.group(1), i) for i in range(int(m.group(2)), int(m.group(3)) + 1)}
    m = re.match(r"^([vas])(\d+)$", tok)
    if m: return {(m.group(1), int(m.group(2)))}
    if tok in ("vcc", "vcc_lo", "vcc_hi"): return {("x", "vcc")}
    if tok in ("exec", "exec_lo", "exec_hi"): return {("x", "exec")}
    if tok == "m0": return {("x", "m0")}
    return set()

class Ins:
    def __init__(self, text):
        self.text = text
        t = text.split(";")[0].strip()
        self.label = t.endswith(":")
        self.directive = t.startswith(".")
        self.op = ""
        self.wr = set(); self.rd = set()
        self.kind = "other"
        self.srcA = self.srcB = self.srcC = set()
        self.passes = 0
        self.states = 1
        if self.label or self.directive or not t:
            self.states = 0
            self.kind = "none"
            return
        parts = t.split(None, 1)
        self.op = op = parts[0]
        rest = parts[1] if len(parts) > 1 else ""
        ops = [o.strip() for o in rest.split(",")] if rest else []
        if ops:
            last = ops[-1].split()
            mods = last[1:]
            ops[-1] = last[0] if last else ""
        else:
            mods = []
        self.mods = mods
        R = [_regs(o) for o in ops]
        if op == "s_nop":
            self.states = int(ops[0], 0) + 1; self.kind = "nop"; return
        if op.startswith("v_mfma") or op.startswith("v_smfmac"):
            self.kind = "mfma"
            self.passes = 8 if "32x32" in op else 4
            self.wr = R[0]; self.srcA = R[1]; self.srcB = R[2]
            if op.startswith("v_smfmac"):
                self.srcC = R[0]; self.srcB = R[2] | R[3]
            else:
                self.srcC = R[3]
            self.rd = self.srcA | self.srcB | self.srcC
            return
        if op.startswith("v_"):
            self.kind = "valu"
            self.trans = op.startswith(TRANS)
            if op.startswith("v_cmp"):
                self.wr = R[0]; self.rd = set().union(*R[1:])
            elif op.startswith(("v_readfirstlane", "v_readlane")):
                self.wr = R[0]; self.rd = set().union(*R[1:]); self.kind = "valu"; self.rl = True
            elif op.startswith("v_permlane"):
                self.wr = R[0] | R[1]; self.rd = R[0] | R[1]
            elif op.startswith(("v_add_co", "v_sub_co", "v_addc_co", "v_subb_co")):
                self.wr = R[0] | R[1]; self.rd = set().union(*R[2:])
            else:
                self.wr = R[0]; self.rd = set().union(*R[1:]) if len(R) > 1 else set()
                if op.startswith(("v_fmac", "v_dot2c", "v_pk_fmac", "v_writelane")): self.rd |= R[0]
                if op.startswith("v_cndmask") and len(ops) == 3: self.rd |= {("x", "vcc")}
            self.dpp = any(m.startswith(("row_", "quad_perm", "wave_", "row_bcast")) for m in mods) or "_dpp" in op
            return
        if op.startswith(("buffer_", "global_")):
            self.kind = "vmem"
            self.lds = "lds" in mods or "_lds_" in op
            self.store = "store" in op or "atomic" in op
            if self.lds:
                self.rd = set().union(*R) | {("x", "m0")}
            elif op.startswith("buffer_"):
                if "store" in op: self.rd = set().union(*R); self.data = R[0]
                elif "atomic" in op:
                    self.rd = set().union(*R); self.data = R[0]
                    if "sc0" in mods: self.wr = R[0]
                elif "inv" in op or "wbl2" in op: pass
                else: self.wr = R[0]; self.rd = set().union(*R[1:])
            else:
                if "store" in op: self.rd = set().union(*R); self.data = R[1]
                else: self.wr = R[0]; self.rd = set().union(*R[1:])
            self.wide = self.store and ("x3" in op or "x4" in op)
            return
        if op.startswith("ds_"):
            self.kind = "ds"
            if "read" in op or "permute" in op or "swizzle" in op:
                self.wr = R[0]; self.rd = set().union(*R[1:])
            else:
                self.rd = set().union(*R)
            return
        if op.startswith("s_"):
            self.kind = "salu"
            if op.startswith(("s_cmp", "s_cbranch", "s_branch", "s_waitcnt", "s_barrier", "s_endpgm", "s_setprio", "s_sleep", "s_bitcmp")):
                self.rd = set().union(*R) if R else set()
            else:
                self.wr = R[0] if R else set()
                self.rd = set().union(*R[1:]) if len(R) > 1 else set()
                if "saveexec" in op: self.wr |= {("x", "exec")}
            return

def need(p, c):
    n = 0
    vg = lambda s: {r for r in s if r[0] in "va"}
    sg = lambda s: {r for r in s if r[0] == "s" or r == ("x", "vcc")}
    if p.kind == "valu":
        w = vg(p.wr)
        if c.kind == "mfma" and w & c.rd: n = max(n, 2)
        if c.kind == "valu":
            if p.trans and not c.trans and w & c.rd: n = max(n, 1)
            if getattr(c, "rl", False) and w & c.rd: n = max(n, 1)
            if c.op.startswith("v_permlane") and w & c.rd: n = max(n, 2)
            if c.dpp and w & c.rd: n = max(n, 2)
            if sg(p.wr) & c.rd: n = max(n, 4 if c.op.startswith(("v_readlane", "v_writelane")) else 2)
            if p.op.startswith("v_dot") and (w & (c.rd | c.wr)) and not (c.op == p.op and not (w & (c.rd - c.wr))): n = max(n, 3)
        if c.kind == "vmem" and sg(p.wr) & c.rd: n = max(n, 5)
        if c.kind == "salu" and sg(p.wr) & c.rd: n = max(n, 1)
    if p.kind == "mfma":
        big = 12 if p.passes == 8 else 8
        if c.kind == "mfma":
            if p.wr & (c.srcA | c.srcB): n = max(n, big)
            if p.wr & c.srcC and not (p.wr == c.srcC and p.passes == c.passes): n = max(n, big - 2)
            if p.wr & c.wr and not (p.wr & c.srcC): n = max(n, 0)
        elif c.kind in ("valu", "vmem", "ds"):
            if p.wr & (c.rd | c.wr): n = max(n, big)
        if c.kind == "valu" and (p.srcC & c.wr): n = max(n, 7 if p.passes == 8 else 3)
    if p.kind == "salu":
        if ("x", "m0") in p.wr and c.kind == "vmem" and c.lds: n = max(n, 1)
    if p.kind == "vmem" and getattr(p, "wide", False):
        if p.data & c.wr: n = max(n, 2 if c.kind in ("valu", "mfma") else 1)
    return n

class Asm:
    def __init__(self):
        self.L = []
        self.vm = []
        self.lg = []
        self.uid = 0
    def __call__(self, text):
        for line in text.strip("\n").split("\n"):
            line = line.strip()
            if line: self.L.append(line)
    def label(self, name): self.L.append(name + ":")
    def newlabel(self, p="L"):
        self.uid += 1
        return f"{p}_{self.uid}"
    def vmem(self, text, tag=None):
        self(text); self.vm.append(tag)
    def wait_vm(self, tag=None, extra=""):
        if tag is None: n = 0; self.vm = []
        else:
            idx = max(i for i, t in enumerate(self.vm) if t == tag)
            n = len(self.vm) - 1 - idx
            self.vm = self.vm[idx + 1:]
        assert n <= 63
        self(f"s_waitcnt vmcnt({n}) {extra}".strip())
    def ds(self, text, tag=None):
        self(text); self.lg.append(tag)
    def wait_lg(self, tag=None):
        if tag is None: n = 0; self.lg = []
        else:
            idx = max(i for i, t in enumerate(self.lg) if t == tag)
            n = len(self.lg) - 1 - idx
            self.lg = self.lg[idx + 1:]
        n = min(n, 15)
        self(f"s_waitcnt lgkmcnt({n})")

def pad_hazards(lines, verbose=False):
    ins = [Ins(l) for l in lines]
    out = []
    def required(hist, c):
        dist = 0; req = 0
        for p in reversed(hist):
            if dist >= 20: break
            if p.states == 0: continue
            n = need(p, c)
            if n - dist > req: req = n - dist
            dist += p.states
        return req
    hist = []
    total = 0
    for c in ins:
        if c.states and c.kind != "nop":
            r = required(hist, c)
            if r > 0:
                total += r
                while r > 0:
                    k = min(r, 16)
                    nop = Ins(f"s_nop {k-1}")
                    out.append(nop); hist.append(nop); r -= k
        out.append(c); hist.append(c)
    labels = {i.text.split(";")[0].strip()[:-1]: k for k, i in enumerate(out) if i.label}
    for k, b in enumerate(out):
        if b.op.startswith(("s_cbranch", "s_branch")):
            tgt = b.text.split(";")[0].split()[1]
            if tgt not in labels: continue
            h = out[max(0, k - 40):k + 1]
            h = list(h)
            j = labels[tgt]; seen = 0
            while j < len(out) and seen < 20:
                c = out[j]
                if c.states:
                    if c.kind != "nop":
                        r = required(h, c)
                        if r > 0:
                            raise RuntimeError(f"hazard across branch to {tgt}: needs {r} more states before '{c.text}'")
                    h.append(c); seen += c.states
                    if c.op in ("s_branch", "s_endpgm"): break
                j += 1
    if verbose: print("inserted wait states:", total)
    return [("" if i.label or i.directive else "    ") + i.text for i in out]
```

```python
import sys, math, struct
from asmlib import *

NAME = "gated_mix__linear_kernel_hedgehog__grouped_kv_mqa__prompt"
def f32(x): return "0x%08x" % struct.unpack("<I", struct.pack("<f", x))[0]
LOG2E = math.log2(math.e)
QSCALE = LOG2E / math.sqrt(28.0)

WS_ACT  = 0x000000
WS_KV   = 0x800000
WS_G    = 0x840000
WS_WPF  = 0x848000
WS_WOF  = 0x900000
WS_KVP  = 0xA00000
WS_PHIQ = 0xC00000
WS_O    = 0x1000000
WS_SIZE = 0x10000000

def vr(b, n): return f"v[{b}:{b+n-1}]" if n > 1 else f"v{b}"

def srd(a, d, base, size):
    a(f"s_mov_b32 s{d}, s{base}")
    a(f"s_mov_b32 s{d+1}, s{base+1}")
    a(f"s_mov_b32 s{d+2}, {size}")
    a(f"s_mov_b32 s{d+3}, 0x00020000")

def prologue(a, nwg, end):
    a(f"s_cmp_ge_u32 s2, {nwg}")
    a(f"s_cbranch_scc1 {end}")
    a("s_load_dwordx16 s[32:47], s[0:1], 0")
    a("s_load_dwordx8 s[48:55], s[0:1], 64")
    a("s_load_dwordx2 s[56:57], s[0:1], 96")
    a("v_lshrrev_b32 v1, 6, v0")
    a("v_and_b32 v0, 63, v0")
    a("v_readfirstlane_b32 s24, v1")
P_X, P_WQKV, P_WPHI, P_WOA, P_WQ, P_WK, P_WV, P_WOB, P_GATE, P_OUT, P_DBG, P_WS = 32, 34, 36, 38, 42, 44, 46, 48, 50, 52, 54, 56

SLOT = 29184
def slot(k): return k * SLOT

def k1():
    a = Asm()
    END = "K1_end"
    prologue(a, 256, END)
    a("""
    s_and_b32 s3, s2, 7
    s_lshr_b32 s30, s2, 3
    s_lshr_b32 s25, s3, 1
    s_lshl_b32 s25, s25, 3
    s_lshr_b32 s31, s30, 2
    s_add_u32 s25, s25, s31
    s_and_b32 s26, s3, 1
    s_lshl_b32 s26, s26, 2
    s_and_b32 s31, s30, 3
    s_add_u32 s26, s26, s31
    s_lshr_b32 s27, s24, 1
    s_and_b32 s28, s24, 1
    v_lshlrev_b32 v2, 4, v0
    s_waitcnt lgkmcnt(0)
    """)
    srd(a, 4, P_X, 2048 * 896)
    srd(a, 16, P_WS, WS_SIZE)
    a("s_lshl_b32 s60, s25, 6")
    a("s_lshl_b32 s61, s24, 3")
    a("s_add_u32 s60, s60, s61")
    a("s_mul_i32 s60, s60, 896")
    a("s_mul_i32 s61, s61, 912")
    a("s_mov_b32 exec_hi, 0x00ffffff")
    for u in range(2):
        for i in range(8):
            a(f"s_add_u32 m0, s61, {slot(u) + i * 912}")
            a(f"s_add_u32 s62, s60, {(32 * u + i) * 896}")
            a.vmem("buffer_load_dwordx4 v2, s[4:7], s62 offen lds", "x")
    a("s_mov_b32 exec_hi, -1")
    a("""
    v_and_b32 v3, 31, v0          ; l%32
    v_lshrrev_b32 v4, 5, v0       ; half
    v_bfe_u32 v5, v0, 2, 2        ; r = (l%16)/4
    v_and_b32 v6, 3, v0           ; c
    v_bfe_u32 v7, v0, 4, 1        ; colgrp
    """)
    a("""
    v_lshrrev_b32 v8, 3, v0
    v_and_b32 v9, 7, v0
    v_bfe_u32 v10, v0, 4, 1
    v_lshlrev_b32 v10, 2, v10
    v_xor_b32 v9, v9, v10
    v_lshlrev_b32 v9, 4, v9
    v_mul_u32_u24 v10, 896, v8
    v_add_u32 v10, v10, v9        ; pitch 896
    v_mul_u32_u24 v11, 2688, v8
    v_add_u32 v11, v11, v9        ; pitch 2688
    s_mul_i32 s63, s24, 7168
    """)
    a(f"""
    v_mul_u32_u24 v12, 912, v3
    v_lshl_add_u32 v12, v4, 4, v12
    s_mul_i32 s64, s27, {SLOT}
    v_add_u32 v12, s64, v12
    """)
    XF = 64
    WF = 176
    ACC = 232
    PK = 24
    a("s_cmp_eq_u32 s26, 7")
    a("s_cbranch_scc1 K1_kv")
    saved_vm = list(a.vm)
    srd(a, 8, P_WQ, 448 * 896)
    srd(a, 12, P_WQKV, 448 * 2688)
    a(f"s_mul_i32 s65, s24, {56 * 896}")
    a("s_lshl_b32 s66, s26, 7")
    a("s_add_u32 s65, s65, s66")
    a(f"s_mul_i32 s66, s24, {56 * 2688}")
    a("s_mul_i32 s67, s26, 384")
    a("s_add_u32 s66, s66, s67")
    def wdma(r, hf, k):
        for i in range(7):
            a(f"s_add_u32 m0, s63, {slot(k) + i * 1024}")
            if r == 0:
                a(f"s_add_u32 s62, s65, {(224 * hf + 8 * i) * 896}")
                a.vmem("buffer_load_dwordx4 v10, s[8:11], s62 offen lds", f"w{r}{hf}")
            else:
                a(f"s_add_u32 s62, s66, {(224 * hf + 8 * i) * 2688 + (r - 1) * 128}")
                a.vmem("buffer_load_dwordx4 v11, s[12:15], s62 offen lds", f"w{r}{hf}")
    wdma(0, 0, 2); wdma(0, 1, 3); wdma(1, 0, 4)
    a("""
    v_lshl_add_u32 v13, v4, 3, v5
    v_lshlrev_b32 v13, 7, v13
    v_lshrrev_b32 v14, 1, v5
    v_xor_b32 v14, s28, v14
    v_lshl_add_u32 v13, v14, 6, v13
    v_lshl_add_u32 v13, v7, 5, v13
    v_lshl_add_u32 v13, v6, 3, v13
    v_lshlrev_b32 v15, 4, v3        ; token*16
    s_mov_b32 s68, 9363
    s_mov_b32 s69, 516
    s_mov_b32 s70, 0xa08
    """)
    a(f"s_mov_b32 s71, {f32(QSCALE)}")
    a("s_lshl_b32 s72, s25, 12")
    a("s_lshl_b32 s73, s27, 10")
    a("s_add_u32 s72, s72, s73")
    def xfrags():
        a.wait_vm("x")
        a("s_barrier")
        for s in range(28):
            a.ds(f"ds_read_b128 {vr(XF + 4 * s, 4)}, v12 offset:{32 * s}")
            if s == 13: a.wait_lg()
        a.wait_lg()
    def step(k, hf, first, swap=False, base="v13", kstride=2048, second=512, addslot=True):
        if addslot: a(f"v_add_u32 v16, {slot(k)}, {base}")
        else: a(f"v_add_u32 v16, {14 * hf * kstride}, {base}")
        AH = 5
        def rd(s):
            a.ds(f"ds_read_b64_tr_b16 {vr(WF + 4 * s, 2)}, v16 offset:{s * kstride}", f"r{s}")
            a.ds(f"ds_read_b64_tr_b16 {vr(WF + 4 * s + 2, 2)}, v16 offset:{s * kstride + second}", f"r{s}")
        for s in range(AH): rd(s)
        for s in range(14):
            if s + AH < 14: rd(s + AH)
            a.wait_lg(f"r{s}")
            c = "0" if (first and s == 0) else vr(ACC, 16)
            w = vr(WF + 4 * s, 4); x = vr(XF + 4 * (14 * hf + s), 4)
            A, B = (x, w) if swap else (w, x)
            a(f"v_mfma_f32_32x32x16_bf16 {vr(ACC, 16)}, {A}, {B}, {c}")
    def epilogue(r):
        if r == 0:
            a("s_lshl_b32 s74, s26, 4")
            a("s_add_u32 s74, s74, 336")
        else:
            a("s_mul_i32 s74, s26, 48")
            a(f"s_add_u32 s74, s74, {16 * (r - 1)}")
        a("s_lshl_b32 s75, s28, 3")
        a("s_add_u32 s74, s74, s75")
        a("v_add_u32 v17, s74, v4")
        for q in range(4):
            a(f"v_add_u32 v18, {2 * q}, v17")
            a("v_mul_u32_u24 v19, s68, v18")
            a("v_lshrrev_b32 v19, 16, v19")
            a("v_mad_i32_i24 v18, v19, -7, v18")
            a("v_mul_u32_u24 v18, s69, v18")
            a("v_and_or_b32 v18, v18, s70, v15")
            a(f"v_lshl_add_u32 v{20 + q}, v19, 17, v18")
        if r == 0:
            for i in range(16): a(f"v_mul_f32 v{ACC + i}, s71, v{ACC + i}")
        for i in range(8): a(f"v_cvt_pk_bf16_f32 v{PK + i}, v{ACC + 2 * i}, v{ACC + 2 * i + 1}")
        for q in range(4):
            a.vmem(f"buffer_store_dwordx2 {vr(PK + 2 * q, 2)}, v{20 + q}, s[16:19], s72 offen", "st")
    xfrags()
    a.wait_vm("w00"); a("s_barrier")
    wdma(1, 1, 0); wdma(2, 0, 1)
    step(2, 0, True)
    a.wait_vm("w01"); a("s_barrier")
    wdma(2, 1, 2)
    step(3, 1, False); epilogue(0)
    a.wait_vm("w10"); a("s_barrier")
    wdma(3, 0, 3)
    step(4, 0, True)
    a.wait_vm("w11"); a("s_barrier")
    wdma(3, 1, 4)
    step(0, 1, False); epilogue(1)
    a.wait_vm("w20"); a("s_barrier"); step(1, 0, True)
    a.wait_vm("w21"); a("s_barrier"); step(2, 1, False); epilogue(2)
    a.wait_vm("w30"); a("s_barrier"); step(3, 0, True)
    a.wait_vm("w31"); a("s_barrier"); step(4, 1, False); epilogue(3)
    a(f"s_branch {END}")
    a.label("K1_kv")
    a.vm = saved_vm
    a("s_cmp_lt_u32 s24, 2")
    a(f"s_cselect_b32 s8, s{P_WK}, s{P_WV}")
    a(f"s_cselect_b32 s9, s{P_WK + 1}, s{P_WV + 1}")
    a(f"s_mov_b32 s10, {448 * 56}")
    a("s_mov_b32 s11, 0x00020000")
    a("""
    v_lshrrev_b32 v14, 2, v0
    v_mul_u32_u24 v14, 56, v14
    v_lshl_add_u32 v14, v6, 4, v14     ; (l/4)*56 + (l%4)*16
    s_mul_i32 s65, s28, 12544          ; 14 ksteps * 896
    s_mul_i32 s66, s28, 28672          ; 14 * 2048
    s_lshl_b32 s67, s27, 10
    s_add_u32 s66, s66, s67
    """)
    for i in range(14):
        a(f"s_add_u32 m0, s66, {slot(2) + i * 2048}")
        a(f"s_add_u32 s62, s65, {i * 896}")
        a.vmem("buffer_load_dwordx4 v14, s[8:11], s62 offen lds", "wkv")
    srd(a, 20, P_GATE, 896)
    a("s_lshl_b32 s67, s24, 6")
    a("v_add_u32 v17, s67, v0")
    a("v_lshlrev_b32 v18, 1, v17")
    a.vmem("buffer_load_ushort v20, v18, s[20:23], 0 offen", "gw")
    a.vmem("buffer_load_ushort v22, v18, s[20:23], 0 offen offset:512", "gw")
    a(f"""
    v_mov_b32 v21, 0
    v_mov_b32 v23, 0
    v_lshrrev_b32 v18, 4, v17
    v_lshlrev_b32 v18, 11, v18
    v_and_b32 v19, 15, v17
    v_lshl_add_u32 v18, v19, 6, v18
    v_add_u32 v18, {slot(2) + 56}, v18
    """)
    a("s_cmp_ge_u32 s25, 28")
    a("s_cbranch_scc1 K1_kv_phi")
    a("s_cmp_lt_u32 s25, 14")
    a(f"s_cselect_b32 s12, s{P_WOA}, s{P_WOB}")
    a(f"s_cselect_b32 s13, s{P_WOA + 1}, s{P_WOB + 1}")
    a("s_cselect_b32 s76, 0, 14")
    a(f"s_mov_b32 s14, {448 * 896}")
    a("s_mov_b32 s15, 0x00020000")
    a("s_sub_u32 s76, s25, s76")
    a("s_lshr_b32 s77, s76, 1")
    a("s_and_b32 s78, s76, 1")
    a(f"s_mul_i32 s65, s78, {224 * 896}")
    a(f"s_mul_i32 s66, s24, {56 * 896}")
    a("s_add_u32 s65, s65, s66")
    a("s_lshl_b32 s66, s77, 7")
    a("s_add_u32 s65, s65, s66")
    for i in range(7):
        a(f"s_add_u32 m0, s63, {slot(4) + i * 1024}")
        a(f"s_add_u32 s62, s65, {8 * i * 896}")
        a("buffer_load_dwordx4 v10, s[12:15], s62 offen lds")
    a("s_branch K1_kv_go")
    a.label("K1_kv_phi")
    srd(a, 12, P_WPHI, 16 * 1568)
    a("s_sub_u32 s76, s25, 28")
    a("s_lshl_b32 s76, s76, 2")
    a("s_add_u32 s76, s76, s24")
    a("s_mul_i32 s65, s76, 1568")
    a("s_lshl_b32 s66, s24, 11")
    for i in range(2):
        a(f"s_add_u32 m0, s66, {slot(4) + i * 1024}")
        a(f"s_add_u32 s62, s65, {i * 896}")
        a("buffer_load_dwordx4 v14, s[12:15], s62 offen lds")
    a.label("K1_kv_go")
    a(f"""
    v_lshl_add_u32 v13, v4, 3, v5
    v_lshlrev_b32 v13, 6, v13
    v_lshl_add_u32 v13, v7, 5, v13
    v_lshl_add_u32 v13, v6, 3, v13
    s_lshl_b32 s67, s28, 10
    s_add_u32 s67, s67, {slot(2)}
    v_add_u32 v13, s67, v13
    """)
    a.wait_vm()
    a("s_barrier")
    a.ds("ds_write_b64 v18, v[20:21]")
    a("s_cmp_eq_u32 s24, 3")
    a("s_cbranch_scc1 K1_kv_nog")
    a.ds("ds_write_b64 v18, v[22:23] offset:32768")
    a.label("K1_kv_nog")
    for s in range(28):
        a.ds(f"ds_read_b128 {vr(XF + 4 * s, 4)}, v12 offset:{32 * s}")
        if s == 12: a.wait_lg()
    a.wait_lg()
    a("s_barrier")
    a("s_lshl_b32 s72, s25, 1")
    a("s_add_u32 s72, s72, s27")
    a("s_lshl_b32 s73, s72, 7")
    a("s_lshl_b32 s72, s72, 12")
    a(f"s_add_u32 s72, s72, {WS_KV}")
    a(f"s_add_u32 s73, s73, {WS_G}")
    a("s_cmp_eq_u32 s28, 1")
    a("s_cbranch_scc1 K1_kv_v")
    step(0, 0, True, False, "v13", 2048, 256, False)
    step(0, 1, False, False, "v13", 2048, 256, False)
    a("""
    v_and_b32 v17, 0x33, v0
    v_bfe_u32 v18, v0, 2, 1
    v_lshl_add_u32 v17, v18, 3, v17
    v_bfe_u32 v18, v0, 3, 1
    v_lshl_add_u32 v17, v18, 2, v17
    v_lshlrev_b32 v17, 4, v17
    v_lshlrev_b32 v19, 2, v3
    """)
    a(f"v_mul_f32 v18, {f32(-LOG2E)}, v{ACC + 12}")
    a("v_exp_f32 v18, v18")
    for i in range(8): a(f"v_cvt_pk_bf16_f32 v{PK + i}, v{ACC + 2 * i}, v{ACC + 2 * i + 1}")
    a("v_add_f32 v18, 1.0, v18")
    a("v_rcp_f32 v18, v18")
    a("s_mov_b32 exec_lo, 0")
    a(f"v_mov_b32 v{PK + 6}, 0x3f803f80")
    a(f"v_mov_b32 v{PK + 7}, 0")
    a("buffer_store_dword v18, v19, s[16:19], s73 offen")
    a("s_mov_b32 exec_lo, -1")
    a(f"buffer_store_dwordx4 {vr(PK, 4)}, v17, s[16:19], s72 offen")
    a(f"buffer_store_dwordx4 {vr(PK + 4, 4)}, v17, s[16:19], s72 offen offset:1024")
    a("s_branch K1_kv_rel")
    a.label("K1_kv_v")
    step(0, 0, True, True, "v13", 2048, 256, False)
    step(0, 1, False, True, "v13", 2048, 256, False)
    for i in range(8): a(f"v_cvt_pk_bf16_f32 v{PK + i}, v{ACC + 2 * i}, v{ACC + 2 * i + 1}")
    a("s_mov_b32 exec_lo, 0x10000000")
    a("s_mov_b32 exec_hi, 0x10000000")
    for i in range(8): a(f"v_mov_b32 v{PK + i}, 0x3f803f80")
    a("s_mov_b32 exec_lo, 0xe0000000")
    a("s_mov_b32 exec_hi, 0xe0000000")
    for i in range(8): a(f"v_mov_b32 v{PK + i}, 0")
    a("s_mov_b64 exec, -1")
    a(f"buffer_store_dwordx4 {vr(PK, 4)}, v2, s[16:19], s72 offen offset:2048")
    a(f"buffer_store_dwordx4 {vr(PK + 4, 4)}, v2, s[16:19], s72 offen offset:3072")
    a.label("K1_kv_rel")
    a("s_cmp_ge_u32 s25, 28")
    a("s_cbranch_scc1 K1_rel_phi")
    a(f"""
    v_lshl_add_u32 v13, v4, 2, v5
    v_lshlrev_b32 v13, 7, v13
    v_lshl_add_u32 v13, v7, 5, v13
    v_lshl_add_u32 v13, v6, 3, v13
    s_add_u32 s67, s63, {slot(4)}
    v_add_u32 v13, s67, v13
    v_lshrrev_b32 v14, 1, v5
    v_lshl_add_u32 v16, v14, 6, v13
    v_xor_b32 v14, 1, v14
    v_lshl_add_u32 v17, v14, 6, v13
    """)
    a("s_sub_u32 s65, s25, s78")
    a("s_lshl_b32 s65, s65, 4")
    a("s_lshl_b32 s66, s78, 3")
    a("s_add_u32 s65, s65, s66")
    a("s_lshl_b32 s66, s24, 1")
    a("s_add_u32 s65, s65, s66")
    a("s_lshl_b32 s65, s65, 11")
    a(f"s_add_u32 s65, s65, {WS_WOF}")
    a(f"s_add_u32 s66, s65, {16 * 2048}")
    n = 0
    for ci in range(2):
        for hl in range(2):
            for m in range(2):
                for pos in range(2):
                    a.ds(f"ds_read_b64_tr_b16 {vr(XF + 4 * n + 2 * pos, 2)}, v{16 + ci} offset:{(28 * hl + 16 * m + 8 * pos) * 128}")
                n += 1
        a.wait_lg()
    a("s_mov_b32 exec_lo, 0")
    for n in (1, 3, 5, 7):
        a(f"v_mov_b32 v{XF + 4 * n + 2}, 0")
        a(f"v_mov_b32 v{XF + 4 * n + 3}, 0")
    a("s_mov_b32 exec_lo, -1")
    n = 0
    for ci in range(2):
        for hl in range(2):
            for m in range(2):
                a(f"buffer_store_dwordx4 {vr(XF + 4 * n, 4)}, v2, s[16:19], s{65 + ci} offen offset:{hl * 2048 + m * 1024}")
                n += 1
    a(f"s_branch {END}")
    a.label("K1_rel_phi")
    a(f"""
    v_lshl_add_u32 v13, v4, 2, v5
    v_lshlrev_b32 v13, 6, v13
    v_lshl_add_u32 v14, v7, 2, v6
    v_min_u32 v14, 6, v14
    v_lshl_add_u32 v13, v14, 3, v13
    s_lshl_b32 s67, s24, 11
    s_add_u32 s67, s67, {slot(4)}
    v_add_u32 v13, s67, v13
    s_lshl_b32 s65, s76, 11
    s_add_u32 s65, s65, {WS_WPF}
    """)
    for m in range(2):
        for pos in range(2):
            a.ds(f"ds_read_b64_tr_b16 {vr(XF + 4 * m + 2 * pos, 2)}, v13 offset:{(16 * m + 8 * pos) * 64}")
    a.wait_lg()
    a("s_mov_b32 exec_lo, 0")
    a(f"v_mov_b32 v{XF + 6}, 0")
    a(f"v_mov_b32 v{XF + 7}, 0")
    a("s_mov_b32 exec_lo, -1")
    a(f"buffer_store_dwordx4 {vr(XF, 4)}, v2, s[16:19], s65 offen")
    a(f"buffer_store_dwordx4 {vr(XF + 4, 4)}, v2, s[16:19], s65 offen offset:1024")
    a.label(END)
    a("s_endpgm")
    return a.L, 248, 5 * SLOT

def decode_tb_h(a):
    a("""
    s_and_b32 s3, s2, 7
    s_lshr_b32 s30, s2, 3
    s_lshr_b32 s25, s3, 1
    s_lshl_b32 s25, s25, 2
    s_lshr_b32 s31, s30, 3
    s_add_u32 s25, s25, s31
    s_and_b32 s26, s3, 1
    s_lshl_b32 s26, s26, 3
    s_and_b32 s31, s30, 7
    s_add_u32 s26, s26, s31
    """)

def xhalf(a, op, r, t):
    a(f"v_mov_b32 v{t}, v{r}")
    a(f"v_permlane32_swap_b32 v{r}, v{t}")
    a(f"{op} v{r}, v{r}, v{t}")

def features(a, P, EP, EM, FP, FM, T, SL, VMASK):
    mx, mn, t0, t1 = T, T + 1, T + 2, T + 3
    a(f"v_max3_f32 v{mx}, v{P}, v{P+1}, v{P+2}")
    a(f"v_min3_f32 v{mn}, v{P}, v{P+1}, v{P+2}")
    for i in range(3, 15, 2):
        a(f"v_max3_f32 v{mx}, v{mx}, v{P+i}, v{P+i+1}")
        a(f"v_min3_f32 v{mn}, v{mn}, v{P+i}, v{P+i+1}")
    a(f"v_max_f32 v{mx}, v{mx}, v{P+15}")
    a(f"v_min_f32 v{mn}, v{mn}, v{P+15}")
    a(f"v_mov_b32 v{t0}, v{mx}")
    a(f"v_mov_b32 v{t1}, v{mn}")
    a(f"v_permlane32_swap_b32 v{mx}, v{t0}")
    a(f"v_permlane32_swap_b32 v{mn}, v{t1}")
    a(f"v_max_f32 v{mx}, v{mx}, v{t0}")
    a(f"v_min_f32 v{mn}, v{mn}, v{t1}")
    a(f"v_mul_f32 v{mx}, s{SL}, v{mx}")
    a(f"v_mul_f32 v{mn}, s{SL}, v{mn}")
    for i in range(16):
        a(f"v_fma_f32 v{EP+i}, v{P+i}, s{SL}, -v{mx}")
        a(f"v_fma_f32 v{EM+i}, -v{P+i}, s{SL}, v{mn}")
    for i in range(16):
        a(f"v_exp_f32 v{EP+i}, v{EP+i}")
        a(f"v_exp_f32 v{EM+i}, v{EM+i}")
    for E, s, t in ((EP, mx, t0), (EM, mn, t1)):
        a(f"v_add_f32 v{t}, v{E+12}, v{E+13}")
        a(f"v_add_f32 v{s}, v{E}, v{E+1}")
        a(f"v_add_f32 v{t}, v{t}, v{E+14}")
        for i in range(2, 12): a(f"v_add_f32 v{s}, v{s}, v{E+i}")
        a(f"v_add_f32 v{t}, v{t}, v{E+15}")
        a(f"v_fma_f32 v{s}, v{t}, v{VMASK}, v{s}")
    a(f"v_mov_b32 v{t0}, v{mx}")
    a(f"v_mov_b32 v{t1}, v{mn}")
    a(f"v_permlane32_swap_b32 v{mx}, v{t0}")
    a(f"v_permlane32_swap_b32 v{mn}, v{t1}")
    a(f"v_add_f32 v{mx}, v{mx}, v{t0}")
    a(f"v_add_f32 v{mn}, v{mn}, v{t1}")
    a(f"v_rcp_f32 v{mx}, v{mx}")
    a(f"v_rcp_f32 v{mn}, v{mn}")
    for i in range(16):
        a(f"v_mul_f32 v{EP+i}, v{EP+i}, v{mx}")
        a(f"v_mul_f32 v{EM+i}, v{EM+i}, v{mn}")
    for i in range(8):
        a(f"v_cvt_pk_bf16_f32 v{FP+i}, v{EP+2*i}, v{EP+2*i+1}")
        a(f"v_cvt_pk_bf16_f32 v{FM+i}, v{EM+2*i}, v{EM+2*i+1}")

def mm2(a, D, A, B, C="0"):
    a(f"v_mfma_f32_32x32x16_bf16 {vr(D,16)}, {vr(A,4)}, {vr(B,4)}, {C}")
    a(f"v_mfma_f32_32x32x16_bf16 {vr(D,16)}, {vr(A+4,4)}, {vr(B+4,4)}, {vr(D,16)}")
def pack16(a, F, D):
    for i in range(8): a(f"v_cvt_pk_bf16_f32 v{F+i}, v{D+2*i}, v{D+2*i+1}")

def k2():
    a = Asm()
    END = "K2_end"
    prologue(a, 256, END)
    decode_tb_h(a)
    a("v_lshlrev_b32 v2, 4, v0")
    a("v_and_b32 v3, 31, v0")
    a("v_lshrrev_b32 v4, 5, v0")
    a("s_waitcnt lgkmcnt(0)")
    srd(a, 16, P_WS, WS_SIZE)
    Q = 16
    O = 48
    SB = 112
    KF = 176
    VF = 208
    IDX = 5; GATE = 6; VMASK = 7; M = 8
    T = 12
    K0 = 240
    QA, KA, VA, WP, ID = O, O + 8, O + 16, O + 24, O + 32
    FP, FM, VT = O + 40, O + 48, O + 56
    def tile_off(dst, tt_s):
        a(f"s_lshr_b32 s{dst}, s{tt_s}, 1")
        a(f"s_lshl_b32 s{dst}, s{dst}, 12")
        a(f"s_and_b32 s31, s{tt_s}, 1")
        a("s_lshl_b32 s31, s31, 10")
        a(f"s_add_u32 s{dst}, s{dst}, s31")
    a("s_lshl_b32 s60, s25, 2")
    a("s_add_u32 s61, s60, s24")
    tile_off(62, 61)
    a("s_lshl_b32 s63, s26, 17")
    a("s_add_u32 s62, s62, s63")
    for mat, R in ((1, KA), (2, VA), (0, QA)):
        a(f"s_add_u32 s64, s62, {mat * 0x200000}")
        a.vmem(f"buffer_load_dwordx4 {vr(R,4)}, v2, s[16:19], s64 offen", "act")
        a.vmem(f"buffer_load_dwordx4 {vr(R+4,4)}, v2, s[16:19], s64 offen offset:2048", "act")
    a("s_lshl_b32 s64, s26, 11")
    a(f"s_add_u32 s64, s64, {WS_WPF}")
    a.vmem(f"buffer_load_dwordx4 {vr(WP,4)}, v2, s[16:19], s64 offen", "act")
    a.vmem(f"buffer_load_dwordx4 {vr(WP+4,4)}, v2, s[16:19], s64 offen offset:1024", "act")
    for ql in range(4):
        a(f"s_add_u32 s65, s24, {ql}")
        a("s_and_b32 s65, s65, 3")
        a("s_add_u32 s65, s65, s60")
        tile_off(64, 65)
        a("s_add_u32 s64, s64, s63")
        a(f"s_add_u32 s64, s64, {3 * 0x200000}")
        a.vmem(f"buffer_load_dwordx4 {vr(Q+8*ql,4)}, v2, s[16:19], s64 offen", "q")
        a.vmem(f"buffer_load_dwordx4 {vr(Q+8*ql+4,4)}, v2, s[16:19], s64 offen offset:2048", "q")
    a(f"s_mov_b32 s64, {WS_KV}")
    a.vmem(f"buffer_load_dwordx4 {vr(K0,4)}, v2, s[16:19], s64 offen", "q")
    a.vmem(f"buffer_load_dwordx4 {vr(K0+4,4)}, v2, s[16:19], s64 offen offset:1024", "q")
    a("s_lshl_b32 s64, s61, 7")
    a(f"s_add_u32 s64, s64, {WS_G}")
    a("v_lshlrev_b32 v12, 2, v3")
    a.vmem(f"buffer_load_dword v{GATE}, v12, s[16:19], s64 offen", "q")
    a("s_lshl_b32 s66, s24, 16")
    a(f"s_add_u32 s66, s66, {WS_KV}")
    def kv_prologue():
        for i in range(4):
            a(f"s_add_u32 s64, s66, {i * 4096}")
            a.vmem(f"buffer_load_dwordx4 {vr(KF+8*i,4)}, v2, s[16:19], s64 offen", "kv")
            a.vmem(f"buffer_load_dwordx4 {vr(KF+8*i+4,4)}, v2, s[16:19], s64 offen offset:1024", "kv")
            if i < 3:
                a.vmem(f"buffer_load_dwordx4 {vr(VF+8*i,4)}, v2, s[16:19], s64 offen offset:2048", "kv")
                a.vmem(f"buffer_load_dwordx4 {vr(VF+8*i+4,4)}, v2, s[16:19], s64 offen offset:3072", "kv")
    kv_prologue()
    a(f"v_mov_b32 v{IDX}, 0xdddddddd")
    a(f"s_mov_b32 s70, {f32(LOG2E)}")
    a(f"v_sub_u32 v{VMASK}, 1, v4")
    a(f"v_cvt_f32_u32 v{VMASK}, v{VMASK}")
    a("""
    v_and_b32 v12, 1, v0
    v_lshlrev_b32 v12, 4, v12
    v_mov_b32 v13, 0x3f80
    v_lshlrev_b32 v12, v12, v13
    v_lshlrev_b32 v13, 2, v4
    v_sub_u32 v13, v3, v13
    v_lshrrev_b32 v13, 1, v13
    """)
    for n, b in enumerate((0, 1, 4, 5, 8, 9, 12, 13)):
        a(f"v_cmp_eq_u32 vcc, {b}, v13")
        a(f"v_cndmask_b32 v{ID+n}, 0, v12, vcc")
    a.wait_vm("act")
    a("s_mov_b32 exec_lo, 0")
    for R in (QA, KA): a(f"v_mov_b32 v{R+6}, 0"); a(f"v_mov_b32 v{R+7}, 0")
    a(f"v_mov_b32 v{VA+6}, 0x3f80"); a(f"v_mov_b32 v{VA+7}, 0")
    a("s_mov_b32 exec_lo, -1")
    mm2(a, SB, WP, KA)
    mm2(a, SB + 48, VA, ID)
    features(a, SB, SB + 16, SB + 32, FP, FM, T, 70, VMASK)
    pack16(a, VT, SB + 48)
    mm2(a, SB, FP, ID)
    mm2(a, SB + 16, FM, ID)
    mm2(a, SB + 48, WP, QA)
    pack16(a, FP, SB)
    pack16(a, FM, SB + 16)
    mm2(a, SB, FP, VT)
    mm2(a, SB + 16, FM, VT)
    a("s_lshl_b32 s64, s24, 13")
    a("v_add_u32 v12, s64, v2")
    for i in range(8):
        a.ds(f"ds_write_b128 v12, {vr(SB+4*i,4)} offset:{i*1024}")
    a.wait_lg()
    a("s_barrier")
    a("s_lshl_b32 s64, s24, 11")
    a("v_add_u32 v12, s64, v2")
    for src in range(4):
        for i in range(2):
            a.ds(f"ds_read_b128 {vr(SB+8*src+4*i,4)}, v12 offset:{src*8192+i*1024}")
    a.wait_lg()
    for i in range(8):
        a(f"v_add_f32 v{SB+i}, v{SB+i}, v{SB+8+i}")
        a(f"v_add_f32 v{SB+16+i}, v{SB+16+i}, v{SB+24+i}")
    for i in range(8): a(f"v_add_f32 v{SB+i}, v{SB+i}, v{SB+16+i}")
    a("s_lshl_b32 s64, s26, 4")
    a("s_add_u32 s64, s64, s25")
    a("s_lshl_b32 s64, s64, 13")
    a("s_lshl_b32 s65, s24, 11")
    a("s_add_u32 s64, s64, s65")
    a(f"s_add_u32 s64, s64, {WS_KVP}")
    a.vmem(f"buffer_store_dwordx4 {vr(SB,4)}, v2, s[16:19], s64 offen", "st")
    a.vmem(f"buffer_store_dwordx4 {vr(SB+4,4)}, v2, s[16:19], s64 offen offset:1024", "st")
    features(a, SB + 48, SB + 16, SB + 32, FP, FM, T, 70, VMASK)
    a("s_mov_b32 exec_lo, 0")
    for R in (FP, FM): a(f"v_mov_b32 v{R+6}, 0"); a(f"v_mov_b32 v{R+7}, 0")
    a("s_mov_b32 exec_lo, -1")
    a("s_lshl_b32 s64, s26, 6")
    a("s_add_u32 s64, s64, s61")
    a("s_lshl_b32 s64, s64, 12")
    a(f"s_add_u32 s64, s64, {WS_PHIQ}")
    for i in range(4):
        a.vmem(f"buffer_store_dwordx4 {vr(FP+4*i,4)}, v2, s[16:19], s64 offen offset:{i*1024}", "st")
    a.wait_vm()
    def zero_pads():
        a("s_mov_b32 exec_lo, 0")
        for ql in range(4): a(f"v_mov_b32 v{Q+8*ql+6}, 0"); a(f"v_mov_b32 v{Q+8*ql+7}, 0")
        a("s_mov_b32 exec_lo, -1")
    zero_pads()
    for ql in range(4): mm2(a, SB + 16 * ql, K0, Q + 8 * ql)
    for ql in range(4):
        S = SB + 16 * ql
        a(f"v_max3_f32 v{M+ql}, v{S}, v{S+1}, v{S+2}")
        for i in range(3, 15, 2): a(f"v_max3_f32 v{M+ql}, v{M+ql}, v{S+i}, v{S+i+1}")
        a(f"v_max_f32 v{M+ql}, v{M+ql}, v{S+15}")
    for ql in range(4): xhalf(a, "v_max_f32", M + ql, T + ql)
    a("s_mov_b32 s71, 0")
    a.label("K2_setm")
    for ql in range(4):
        a(f"v_cvt_pk_bf16_f32 v{T+ql}, v{M+ql}, v{M+ql}")
        a(f"v_lshlrev_b32 v{T+ql}, 16, v{T+ql}")
        a(f"v_sub_f32 v{M+ql}, v{M+ql}, v{T+ql}")
    a("s_mov_b32 exec_lo, 0")
    for ql in range(4): a(f"v_cvt_pk_bf16_f32 v{Q+8*ql+6}, -v{T+ql}, -v{M+ql}")
    a("s_mov_b32 exec_lo, -1")
    for i in range(64): a(f"v_mov_b32 v{O+i}, 0")
    for i in range(8): a(f"v_mov_b32 v{SB+48+8+i}, 0")
    for i in range(4): a(f"v_mov_b32 v{VF+24+4+i}, 0")
    a("s_waitcnt vmcnt(0)")
    mm2(a, SB, KF, Q)
    a("s_mov_b32 s67, s66")
    a("s_mov_b32 s68, 4")
    a("s_nop 7")
    a("s_nop 3")
    a(".p2align 6")
    a.label("K2_loop")
    for i in range(4):
        for q in range(4):
            nq = (q + 1) % 4; ni = (i + (q == 3)) % 4
            pq = (q - 1) % 4; pi = (i - (q == 0)) % 4
            S = SB + 16 * q
            if q == 3: a("s_waitcnt vmcnt(10)")
            a(f"v_mfma_f32_32x32x16_bf16 {vr(SB+16*nq,16)}, {vr(KF+8*ni,4)}, {vr(Q+8*nq,4)}, 0")
            for e in range(0, 4): a(f"v_exp_f32 v{S+e}, v{S+e}")
            a(f"v_mfma_f32_32x32x16_bf16 {vr(SB+16*nq,16)}, {vr(KF+8*ni+4,4)}, {vr(Q+8*nq+4,4)}, {vr(SB+16*nq,16)}")
            for e in range(4, 8):
                a(f"v_exp_f32 v{S+e}, v{S+e}")
                if q == 2 and e == 4: a(f"s_add_u32 s64, s67, {(i + 4) * 4096}")
                if q == 2 and e == 5: a(f"buffer_load_dwordx4 {vr(KF+8*i,4)}, v2, s[16:19], s64 offen")
                if q == 2 and e == 6: a(f"buffer_load_dwordx4 {vr(KF+8*i+4,4)}, v2, s[16:19], s64 offen offset:1024")
            a(f"v_smfmac_f32_32x32x32_bf16 {vr(O+16*pq,16)}, {vr(VF+8*pi+4,4)}, {vr(SB+16*pq+8,8)}, v{IDX}")
            for e in range(8, 12):
                a(f"v_exp_f32 v{S+e}, v{S+e}")
                if q == 0 and e == 8: a(f"s_add_u32 s64, s67, {(i + 3) * 4096}")
                if q == 0 and e == 9: a(f"buffer_load_dwordx4 {vr(VF+8*pi,4)}, v2, s[16:19], s64 offen offset:2048")
                if q == 0 and e == 10: a(f"buffer_load_dwordx4 {vr(VF+8*pi+4,4)}, v2, s[16:19], s64 offen offset:3072")
            a(f"v_smfmac_f32_32x32x32_bf16 {vr(O+16*q,16)}, {vr(VF+8*i,4)}, {vr(S,8)}, v{IDX}")
            for e in range(12, 16):
                a(f"v_exp_f32 v{S+e}, v{S+e}")
                if i == 3 and q == 3 and e == 12: a("s_add_u32 s67, s67, 16384")
                if i == 3 and q == 3 and e == 13: a("s_sub_u32 s68, s68, 1")
                if i == 3 and q == 3 and e == 14: a("s_cmp_lg_u32 s68, 0")
    a("s_cbranch_scc1 K2_loop")
    a(f"v_smfmac_f32_32x32x32_bf16 {vr(O+48,16)}, {vr(VF+24+4,4)}, {vr(SB+48+8,8)}, v{IDX}")
    LO = 32768
    a(f"s_mov_b32 s72, {f32(2.0**60)}")
    a(f"v_max3_f32 v{T}, v{O+12}, v{O+16+12}, v{O+32+12}")
    for ql in range(1, 4):
        a(f"s_add_u32 s64, s24, {ql}")
        a("s_and_b32 s64, s64, 3")
        a("s_mul_i32 s64, s64, 12288")
        a(f"s_add_u32 s64, s64, {LO + (ql - 1) * 4096}")
        a(f"v_add_u32 v{T+1}, s64, v2")
        for i in range(4):
            a.ds(f"ds_write_b128 v{T+1}, {vr(O+16*ql+4*i,4)} offset:{i*1024}")
    a(f"v_add_f32 v{T}, v{O+12}, v{O+16+12}")
    a(f"v_add_f32 v{T+2}, v{O+32+12}, v{O+48+12}")
    a(f"v_add_f32 v{T}, v{T}, v{T+2}")
    a(f"v_cmp_nge_f32 vcc, s72, v{T}")
    a("s_cmp_lg_u32 vcc_hi, 0")
    a("s_cselect_b32 s73, 1, 0")
    a(f"v_mov_b32 v{T}, s73")
    a("s_lshl_b32 s64, s24, 2")
    a(f"s_add_u32 s64, s64, {LO + 49152}")
    a(f"v_mov_b32 v{T+1}, s64")
    a.ds(f"ds_write_b32 v{T+1}, v{T}")
    a.wait_lg()
    a("s_barrier")
    a(f"v_mov_b32 v{T+1}, {LO + 49152}")
    a.ds(f"ds_read_b128 {vr(M,4)}, v{T+1}", "fl")
    a("s_mul_i32 s64, s24, 12288")
    a(f"s_add_u32 s64, s64, {LO}")
    a(f"v_add_u32 v{T+1}, s64, v2")
    for i in range(12):
        a.ds(f"ds_read_b128 {vr(SB+4*i,4)}, v{T+1} offset:{i*1024}")
    a.wait_lg("fl")
    a(f"v_or3_b32 v{M}, v{M}, v{M+1}, v{M+2}")
    a(f"v_or_b32 v{M}, v{M}, v{M+3}")
    a(f"v_readfirstlane_b32 s73, v{M}")
    a("s_andn2_b32 s73, s73, s71")
    a("s_cbranch_scc1 K2_redo")
    a.wait_lg()
    for i in range(16):
        a(f"v_add_f32 v{O+i}, v{O+i}, v{SB+i}")
        a(f"v_add_f32 v{SB+16+i}, v{SB+16+i}, v{SB+32+i}")
    for i in range(16): a(f"v_add_f32 v{O+i}, v{O+i}, v{SB+16+i}")
    a(f"v_mov_b32 v{T}, v{O+12}")
    a(f"v_mov_b32 v{T+1}, v{O+12}")
    a(f"v_permlane32_swap_b32 v{T}, v{T+1}")
    a(f"v_rcp_f32 v{T+1}, v{T+1}")
    a(f"v_sub_f32 v{T}, 1.0, v{GATE}")
    a(f"v_mul_f32 v{T}, v{T}, v{T+1}")
    for i in range(16): a(f"v_mul_f32 v{O+i}, v{O+i}, v{T}")
    pack16(a, SB, O)
    a("s_lshl_b32 s64, s61, 4")
    a("s_add_u32 s64, s64, s26")
    a("s_lshl_b32 s64, s64, 11")
    a(f"s_add_u32 s64, s64, {WS_O + 0x200000}")
    a(f"buffer_store_dwordx4 {vr(SB,4)}, v2, s[16:19], s64 offen")
    a(f"buffer_store_dwordx4 {vr(SB+4,4)}, v2, s[16:19], s64 offen offset:1024")
    a(f"s_branch {END}")
    a.label("K2_redo")
    a("s_waitcnt vmcnt(0) lgkmcnt(0)")
    a("s_mov_b32 s71, 1")
    zero_pads()
    for ql in range(4): a(f"v_mov_b32 v{M+ql}, 0xff800000")
    a("s_mov_b32 s67, s66")
    a("s_mov_b32 s68, 16")
    a.label("K2_maxloop")
    a(f"buffer_load_dwordx4 {vr(K0,4)}, v2, s[16:19], s67 offen")
    a(f"buffer_load_dwordx4 {vr(K0+4,4)}, v2, s[16:19], s67 offen offset:1024")
    a("s_waitcnt vmcnt(0)")
    for ql in range(4): mm2(a, SB + 16 * ql, K0, Q + 8 * ql)
    for ql in range(4):
        S = SB + 16 * ql
        for i in range(0, 16, 2): a(f"v_max3_f32 v{M+ql}, v{M+ql}, v{S+i}, v{S+i+1}")
    a("s_add_u32 s67, s67, 4096")
    a("s_sub_u32 s68, s68, 1")
    a("s_cmp_lg_u32 s68, 0")
    a("s_cbranch_scc1 K2_maxloop")
    for ql in range(4): xhalf(a, "v_max_f32", M + ql, T + ql)
    a("s_barrier")
    a("v_lshlrev_b32 v12, 2, v0")
    for ql in range(4):
        a(f"s_add_u32 s64, s24, {ql}")
        a("s_and_b32 s64, s64, 3")
        a("s_lshl_b32 s64, s64, 10")
        a(f"v_add_u32 v{SB+ql}, s64, v12")
        a("s_lshl_b32 s65, s24, 8")
        a(f"v_add_u32 v13, s65, v{SB+ql}")
        a(f"ds_write_b32 v13, v{M+ql}")
    a("s_waitcnt lgkmcnt(0)")
    a("s_barrier")
    for ql in range(4):
        for w in range(4):
            a(f"ds_read_b32 v{SB+16+4*ql+w}, v{SB+ql} offset:{w*256}")
        a("s_waitcnt lgkmcnt(0)")
        a(f"v_max3_f32 v{M+ql}, v{SB+16+4*ql}, v{SB+16+4*ql+1}, v{SB+16+4*ql+2}")
        a(f"v_max_f32 v{M+ql}, v{M+ql}, v{SB+16+4*ql+3}")
    kv_prologue()
    a("s_nop 1")
    a("s_branch K2_setm")
    a.label(END)
    a("s_endpgm")
    return a.L, 248, 32768 + 49152 + 64

def k3():
    a = Asm()
    END = "K3_end"
    prologue(a, 256, END)
    decode_tb_h(a)
    a("v_lshlrev_b32 v2, 4, v0")
    a("v_and_b32 v3, 31, v0")
    a("s_waitcnt lgkmcnt(0)")
    srd(a, 16, P_WS, WS_SIZE)
    PT = 16; PH = 144; KVF = 160; ACC = 176
    a("s_lshl_b32 s64, s26, 17")
    a("s_lshl_b32 s65, s24, 11")
    a("s_add_u32 s64, s64, s65")
    a(f"s_add_u32 s64, s64, {WS_KVP}")
    for p in range(16):
        a.vmem(f"buffer_load_dwordx4 {vr(PT+8*p,4)}, v2, s[16:19], s64 offen", "p")
        a.vmem(f"buffer_load_dwordx4 {vr(PT+8*p+4,4)}, v2, s[16:19], s64 offen offset:1024", "p")
        a("s_add_u32 s64, s64, 8192")
    a("s_lshl_b32 s61, s25, 2")
    a("s_add_u32 s61, s61, s24")
    a("s_lshl_b32 s64, s26, 6")
    a("s_add_u32 s64, s64, s61")
    a("s_lshl_b32 s64, s64, 12")
    a(f"s_add_u32 s64, s64, {WS_PHIQ}")
    for i in range(4):
        a.vmem(f"buffer_load_dwordx4 {vr(PH+4*i,4)}, v2, s[16:19], s64 offen offset:{i*1024}", "ph")
    a("s_lshl_b32 s64, s61, 7")
    a(f"s_add_u32 s64, s64, {WS_G}")
    a("v_lshlrev_b32 v12, 2, v3")
    a.vmem("buffer_load_dword v6, v12, s[16:19], s64 offen", "ph")
    a.wait_vm("p")
    n = 16
    while n > 1:
        n //= 2
        for p in range(n):
            for i in range(8): a(f"v_add_f32 v{PT+8*p+i}, v{PT+8*p+i}, v{PT+8*(p+n)+i}")
    for i in range(4): a(f"v_cvt_pk_bf16_f32 v{8+i}, v{PT+2*i}, v{PT+2*i+1}")
    a("s_lshl_b32 s64, s24, 10")
    a("v_add_u32 v12, s64, v2")
    a("ds_write_b128 v12, v[8:11]")
    a("s_waitcnt lgkmcnt(0)")
    a("s_barrier")
    for i in range(4): a(f"ds_read_b128 {vr(KVF+4*i,4)}, v2 offset:{i*1024}")
    a("s_waitcnt vmcnt(0) lgkmcnt(0)")
    for i in range(4):
        a(f"v_mfma_f32_32x32x16_bf16 {vr(ACC,16)}, {vr(KVF+4*i,4)}, {vr(PH+4*i,4)}, {'0' if i == 0 else vr(ACC,16)}")
    a(f"v_mov_b32 v12, v{ACC+12}")
    a(f"v_mov_b32 v13, v{ACC+12}")
    a("v_permlane32_swap_b32 v12, v13")
    a(f"v_add_f32 v13, {f32(1e-6)}, v13")
    a("v_rcp_f32 v13, v13")
    a("v_mul_f32 v13, v13, v6")
    for i in range(16): a(f"v_mul_f32 v{ACC+i}, v{ACC+i}, v13")
    pack16(a, PT, ACC)
    a("s_lshl_b32 s64, s61, 4")
    a("s_add_u32 s64, s64, s26")
    a("s_lshl_b32 s64, s64, 11")
    a(f"s_add_u32 s64, s64, {WS_O}")
    a(f"buffer_store_dwordx4 {vr(PT,4)}, v2, s[16:19], s64 offen")
    a(f"buffer_store_dwordx4 {vr(PT+4,4)}, v2, s[16:19], s64 offen offset:1024")
    a.label(END)
    a("s_endpgm")
    return a.L, 192, 4096

def k4():
    a = Asm()
    END = "K4_end"
    prologue(a, 256, END)
    decode_tb_h(a)
    a("""
    s_lshl_b32 s61, s25, 2
    s_lshr_b32 s62, s26, 2
    s_add_u32 s61, s61, s62
    s_and_b32 s62, s26, 3
    s_lshl_b32 s62, s62, 2
    s_add_u32 s62, s62, s24
    v_lshlrev_b32 v2, 4, v0
    v_and_b32 v3, 31, v0
    v_lshrrev_b32 v4, 5, v0
    s_cmp_ge_u32 s62, 14
    """)
    a(f"s_cbranch_scc1 {END}")
    a("s_waitcnt lgkmcnt(0)")
    srd(a, 16, P_WS, WS_SIZE)
    srd(a, 20, P_OUT, 2048 * 896)
    ACC = 8; AF = 32; BF = 96
    a("s_lshl_b32 s64, s62, 15")
    a(f"s_add_u32 s64, s64, {WS_WOF}")
    a("s_lshl_b32 s65, s61, 15")
    a(f"s_add_u32 s65, s65, {WS_O}")
    first = True
    for br in range(2):
        for c in range(2):
            for n in range(16):
                if n % 4 == 0:
                    a(f"s_add_u32 s66, s64, {br * 14 * 32768 + c * 16384 + n * 1024}")
                    a(f"s_add_u32 s67, s65, {br * 0x200000 + c * 16384 + n * 1024}")
                a.vmem(f"buffer_load_dwordx4 {vr(AF+4*n,4)}, v2, s[16:19], s66 offen offset:{(n%4)*1024}", f"f{n}")
                a.vmem(f"buffer_load_dwordx4 {vr(BF+4*n,4)}, v2, s[16:19], s67 offen offset:{(n%4)*1024}", f"f{n}")
            for n in range(16):
                a.wait_vm(f"f{n}")
                a(f"v_mfma_f32_32x32x16_bf16 {vr(ACC,16)}, {vr(AF+4*n,4)}, {vr(BF+4*n,4)}, {'0' if first else vr(ACC,16)}")
                first = False
    a("v_mul_u32_u24 v5, 896, v3")
    a("v_lshl_add_u32 v5, v4, 3, v5")
    a(f"s_mul_i32 s64, s61, {32 * 896}")
    a("s_lshl_b32 s65, s62, 6")
    a("s_add_u32 s64, s64, s65")
    pack16(a, 24, ACC)
    for q in range(4):
        a(f"buffer_store_dwordx2 {vr(24+2*q,2)}, v5, s[20:23], s64 offen offset:{16*q}")
    a.label(END)
    a("s_endpgm")
    return a.L, 160, 0

def build(kernels, path):
    ref = open(f"cdna_kernels/{NAME}.s.ref").read().split("\n")
    head = [l for l in ref if l.startswith(";") and "@launch" not in l and "Override" not in l and "grid=ceil" not in l]
    out = list(head)
    body = []
    desc = []
    for name, fn in kernels:
        L, nv, lds = fn()
        out.append(f"; @launch kernel={name} grid=(256,1,1) block=(256,1,1) lds={lds}")
        body += [f".globl {name}", ".p2align 8", f".type {name},@function", f"{name}:"] + pad_hazards(L)
        desc += [".p2align 6", f".amdhsa_kernel {name}", f"  .amdhsa_next_free_vgpr {nv}", "  .amdhsa_next_free_sgpr 102",
                 f"  .amdhsa_accum_offset {(nv + 3) // 4 * 4}", "  .amdhsa_group_segment_fixed_size 0", "  .amdhsa_kernarg_size 104",
                 "  .amdhsa_user_sgpr_count 2", "  .amdhsa_user_sgpr_kernarg_segment_ptr 1", "  .amdhsa_system_sgpr_workgroup_id_x 1",
                 ".end_amdhsa_kernel"]
    out += ['.amdgcn_target "amdgcn-amd-amdhsa--gfx950"', ".text"] + body + ['.section .rodata,"a"'] + desc
    open(path, "w").write("\n".join(out) + "\n")

if __name__ == "__main__":
    path = sys.argv[1] if len(sys.argv) > 1 else f"cdna_kernels/{NAME}.s"
    build([("proj_kernel", k1), ("attn_kernel", k2), ("lin_kernel", k3), ("outp_kernel", k4)], path)
```

```python
from gen1 import *
def kempty():
    return ["s_endpgm"], 8, 0
build([("proj_kernel", k1), ("attn_kernel", k2), ("lin_kernel", k3), ("outp_kernel", k4), ("e1_kernel", kempty)], "v_5.s")
build([("proj_kernel", k1), ("attn_kernel", k2), ("lin_kernel", k3), ("outp_kernel", k4), ("e1_kernel", kempty), ("e2_kernel", kempty), ("e3_kernel", kempty)], "v_7.s")
build([("proj_kernel", k1), ("attn_kernel", k2), ("lin_kernel", k3), ("outp_kernel", k4)], "v_4.s")
```

```python
import re

TRANS = ("v_exp_", "v_log_", "v_rcp_", "v_rsq_", "v_sqrt_", "v_sin_", "v_cos_")

def _regs(tok):
    tok = tok.strip()
    tok = re.sub(r"^-", "", tok)
    m = re.match(r"^(?:abs|neg)\((.*)\)$", tok)
    if m: tok = m.group(1)
    tok = tok.strip("|")
    m = re.match(r"^([vas])\[(\d+):(\d+)\]$", tok)
    if m: return {(m.group(1), i) for i in range(int(m.group(2)), int(m.group(3)) + 1)}
    m = re.match(r"^([vas])(\d+)$", tok)
    if m: return {(m.group(1), int(m.group(2)))}
    if tok in ("vcc", "vcc_lo", "vcc_hi"): return {("x", "vcc")}
    if tok in ("exec", "exec_lo", "exec_hi"): return {("x", "exec")}
    if tok == "m0": return {("x", "m0")}
    return set()

class Ins:
    def __init__(self, text):
        self.text = text
        t = text.split(";")[0].strip()
        self.label = t.endswith(":")
        self.directive = t.startswith(".")
        self.op = ""
        self.wr = set(); self.rd = set()
        self.kind = "other"
        self.srcA = self.srcB = self.srcC = set()
        self.passes = 0
        self.states = 1
        if self.label or self.directive or not t:
            self.states = 0
            self.kind = "none"
            return
        parts = t.split(None, 1)
        self.op = op = parts[0]
        rest = parts[1] if len(parts) > 1 else ""
        ops = [o.strip() for o in rest.split(",")] if rest else []
        if ops:
            last = ops[-1].split()
            mods = last[1:]
            ops[-1] = last[0] if last else ""
        else:
            mods = []
        self.mods = mods
        R = [_regs(o) for o in ops]
        if op == "s_nop":
            self.states = int(ops[0], 0) + 1; self.kind = "nop"; return
        if op.startswith("v_mfma") or op.startswith("v_smfmac"):
            self.kind = "mfma"
            self.passes = 8 if "32x32" in op else 4
            self.wr = R[0]; self.srcA = R[1]; self.srcB = R[2]
            if op.startswith("v_smfmac"):
                self.srcC = R[0]; self.srcB = R[2] | R[3]
            else:
                self.srcC = R[3]
            self.rd = self.srcA | self.srcB | self.srcC
            return
        if op.startswith("v_"):
            self.kind = "valu"
            self.trans = op.startswith(TRANS)
            if op.startswith("v_cmp"):
                self.wr = R[0]; self.rd = set().union(*R[1:])
            elif op.startswith(("v_readfirstlane", "v_readlane")):
                self.wr = R[0]; self.rd = set().union(*R[1:]); self.kind = "valu"; self.rl = True
            elif op.startswith("v_permlane"):
                self.wr = R[0] | R[1]; self.rd = R[0] | R[1]
            elif op.startswith(("v_add_co", "v_sub_co", "v_addc_co", "v_subb_co")):
                self.wr = R[0] | R[1]; self.rd = set().union(*R[2:])
            else:
                self.wr = R[0]; self.rd = set().union(*R[1:]) if len(R) > 1 else set()
                if op.startswith(("v_fmac", "v_dot2c", "v_pk_fmac", "v_writelane")): self.rd |= R[0]
                if op.startswith("v_cndmask") and len(ops) == 3: self.rd |= {("x", "vcc")}
            self.dpp = any(m.startswith(("row_", "quad_perm", "wave_", "row_bcast")) for m in mods) or "_dpp" in op
            return
        if op.startswith(("buffer_", "global_")):
            self.kind = "vmem"
            self.lds = "lds" in mods or "_lds_" in op
            self.store = "store" in op or "atomic" in op
            if self.lds:
                self.rd = set().union(*R) | {("x", "m0")}
            elif op.startswith("buffer_"):
                if "store" in op: self.rd = set().union(*R); self.data = R[0]
                elif "atomic" in op:
                    self.rd = set().union(*R); self.data = R[0]
                    if "sc0" in mods: self.wr = R[0]
                elif "inv" in op or "wbl2" in op: pass
                else: self.wr = R[0]; self.rd = set().union(*R[1:])
            else:
                if "store" in op: self.rd = set().union(*R); self.data = R[1]
                else: self.wr = R[0]; self.rd = set().union(*R[1:])
            self.wide = self.store and ("x3" in op or "x4" in op)
            return
        if op.startswith("ds_"):
            self.kind = "ds"
            if "read" in op or "permute" in op or "swizzle" in op:
                self.wr = R[0]; self.rd = set().union(*R[1:])
            else:
                self.rd = set().union(*R)
            return
        if op.startswith("s_"):
            self.kind = "salu"
            if op.startswith(("s_cmp", "s_cbranch", "s_branch", "s_waitcnt", "s_barrier", "s_endpgm", "s_setprio", "s_sleep", "s_bitcmp")):
                self.rd = set().union(*R) if R else set()
            else:
                self.wr = R[0] if R else set()
                self.rd = set().union(*R[1:]) if len(R) > 1 else set()
                if "saveexec" in op: self.wr |= {("x", "exec")}
            return

def need(p, c):
    n = 0
    vg = lambda s: {r for r in s if r[0] in "va"}
    sg = lambda s: {r for r in s if r[0] == "s" or r == ("x", "vcc")}
    if p.kind == "valu":
        w = vg(p.wr)
        if c.kind == "mfma" and w & c.rd: n = max(n, 2)
        if c.kind == "valu":
            if p.trans and not c.trans and w & c.rd: n = max(n, 1)
            if getattr(c, "rl", False) and w & c.rd: n = max(n, 1)
            if c.op.startswith("v_permlane") and w & c.rd: n = max(n, 2)
            if c.dpp and w & c.rd: n = max(n, 2)
            if sg(p.wr) & c.rd: n = max(n, 4 if c.op.startswith(("v_readlane", "v_writelane")) else 2)
            if p.op.startswith("v_dot") and (w & (c.rd | c.wr)) and not (c.op == p.op and not (w & (c.rd - c.wr))): n = max(n, 3)
        if c.kind == "vmem" and sg(p.wr) & c.rd: n = max(n, 5)
        if c.kind == "salu" and sg(p.wr) & c.rd: n = max(n, 1)
    if p.kind == "mfma":
        big = 12 if p.passes == 8 else 8
        if c.kind == "mfma":
            if p.wr & (c.srcA | c.srcB): n = max(n, big)
            if p.wr & c.srcC and not (p.wr == c.srcC and p.passes == c.passes): n = max(n, big - 2)
            if p.wr & c.wr and not (p.wr & c.srcC): n = max(n, 0)
        elif c.kind in ("valu", "vmem", "ds"):
            if p.wr & (c.rd | c.wr): n = max(n, big)
        if c.kind == "valu" and (p.srcC & c.wr): n = max(n, 7 if p.passes == 8 else 3)
    if p.kind == "salu":
        if ("x", "m0") in p.wr and c.kind == "vmem" and c.lds: n = max(n, 1)
    if p.kind == "vmem" and getattr(p, "wide", False):
        if p.data & c.wr: n = max(n, 2 if c.kind in ("valu", "mfma") else 1)
    return n

class Asm:
    def __init__(self):
        self.L = []
        self.vm = []
        self.lg = []
        self.uid = 0
    def __call__(self, text):
        for line in text.strip("\n").split("\n"):
            line = line.strip()
            if line: self.L.append(line)
    def label(self, name): self.L.append(name + ":")
    def newlabel(self, p="L"):
        self.uid += 1
        return f"{p}_{self.uid}"
    def vmem(self, text, tag=None):
        self(text); self.vm.append(tag)
    def wait_vm(self, tag=None, extra=""):
        if tag is None: n = 0; self.vm = []
        else:
            idx = max(i for i, t in enumerate(self.vm) if t == tag)
            n = len(self.vm) - 1 - idx
            self.vm = self.vm[idx + 1:]
        assert n <= 63
        self(f"s_waitcnt vmcnt({n}) {extra}".strip())
    def ds(self, text, tag=None):
        self(text); self.lg.append(tag)
    def wait_lg(self, tag=None):
        if tag is None: n = 0; self.lg = []
        else:
            idx = max(i for i, t in enumerate(self.lg) if t == tag)
            n = len(self.lg) - 1 - idx
            self.lg = self.lg[idx + 1:]
        n = min(n, 15)
        self(f"s_waitcnt lgkmcnt({n})")

def pad_hazards(lines, verbose=False):
    ins = [Ins(l) for l in lines]
    out = []
    def required(hist, c):
        dist = 0; req = 0
        for p in reversed(hist):
            if dist >= 20: break
            if p.states == 0: continue
            n = need(p, c)
            if n - dist > req: req = n - dist
            dist += p.states
        return req
    hist = []
    total = 0
    for c in ins:
        if c.states and c.kind != "nop":
            r = required(hist, c)
            if r > 0:
                total += r
                while r > 0:
                    k = min(r, 16)
                    nop = Ins(f"s_nop {k-1}")
                    out.append(nop); hist.append(nop); r -= k
        out.append(c); hist.append(c)
    changed = True
    while changed:
        changed = False
        labels = {i.text.split(";")[0].strip()[:-1]: k for k, i in enumerate(out) if i.label}
        for k, b in enumerate(out):
            if b.op.startswith(("s_cbranch", "s_branch")):
                tgt = b.text.split(";")[0].split()[1]
                if tgt not in labels: continue
                h = list(out[max(0, k - 40):k + 1])
                j = labels[tgt]; seen = 0
                while j < len(out) and seen < 20:
                    c = out[j]
                    if c.states:
                        if c.kind != "nop":
                            r = required(h, c)
                            if r > 0:
                                if tgt == "L_loop": raise RuntimeError(f"hazard across branch to {tgt}: needs {r} more states before '{c.text}'")
                                out.insert(j, Ins(f"s_nop {r-1}")); total += r; changed = True
                                break
                        h.append(c); seen += c.states
                        if c.op in ("s_branch", "s_endpgm"): break
                    j += 1
                if changed: break
    if verbose: print("inserted wait states:", total)
    return [("" if i.label or i.directive else "    ") + i.text for i in out]
```

```python
import sys, math, struct
from asmlib import *

NAME = "gated_mix__linear_kernel_hedgehog__grouped_kv_mqa__prompt"
def f32(x): return "0x%08x" % struct.unpack("<I", struct.pack("<f", x))[0]
LOG2E = math.log2(math.e)
QSCALE = LOG2E / math.sqrt(28.0)

WS_KV   = 0x000000
WS_KVS  = 0x080000
WS_TAG  = 0x0A0000
WS_FL   = 0x0A0080
WS_O    = 0x100000
WS_SIZE = 0x10000000
ST_KV, ST_SUM, ST_OA, ST_OB = 0, 1, 2, 3

SLOT = 29184
def slot(k): return k * SLOT
L_HK, L_HQ, L_HG, L_PHI = slot(3), slot(3) + 8192, slot(3) + 16384, slot(5) + 14336
L_HP = slot(4) - 8192
L_KVR = slot(4) + 8192
L_WA, L_WB = 0, 58368
L_OA = 58368
L_ORED = 91136
L_OB = 0
L_CNT = 163584
LDS_SIZE = 163840
C_KV, C_Q, C_S, C_QR, C_O, C_R, C_W, C_A, C_B, C_E = 0, 4, 8, 12, 16, 20, 24, 28, 48, 52
L_OVF = L_CNT + 32

P_X, P_WQKV, P_WPHI, P_WOA, P_WQ, P_WK, P_WV, P_WOB, P_GATE, P_OUT, P_DBG, P_WS = 32, 34, 36, 38, 42, 44, 46, 48, 50, 52, 54, 56
S_WAVE, S_W4, S_JOB, S_TI, S_CI, S_TB, S_H, S_TAG, S_TT, S_ID = 24, 25, 26, 28, 29, 30, 31, 58, 59, 79
S_L2E, S_RETRY, S_KVB, S_OTGT = 80, 81, 82, 83
SC = " sc1"
OPT = dict(touch=False, rot=True, codepf=True)

def vr(b, n): return f"v[{b}:{b+n-1}]" if n > 1 else f"v{b}"
def srd(a, d, base, size):
    a(f"s_mov_b32 s{d}, s{base}"); a(f"s_mov_b32 s{d+1}, s{base+1}")
    a(f"s_mov_b32 s{d+2}, {size}"); a(f"s_mov_b32 s{d+3}, 0x00020000")
def mm2(a, D, A, B, C="0"):
    a(f"v_mfma_f32_32x32x16_bf16 {vr(D,16)}, {vr(A,4)}, {vr(B,4)}, {C}")
    a(f"v_mfma_f32_32x32x16_bf16 {vr(D,16)}, {vr(A+4,4)}, {vr(B+4,4)}, {vr(D,16)}")
def pack16(a, F, D):
    for i in range(8): a(f"v_cvt_pk_bf16_f32 v{F+i}, v{D+2*i}, v{D+2*i+1}")
def xhalf(a, op, r, t):
    a(f"v_mov_b32 v{t}, v{r}"); a(f"v_permlane32_swap_b32 v{r}, v{t}"); a(f"{op} v{r}, v{r}, v{t}")

STAMPS = False
V_ST = 15
def stamp(a, n):
    if STAMPS: a("s_memrealtime s[88:89]"); a("s_waitcnt lgkmcnt(0)"); a(f"v_writelane_b32 v{V_ST}, s88, {n}"); a.lgdone()

def _lgdone(self): self.lg = [("done", t) for t in self.lg][:0]; self._all_lg_done = True
Asm.lgdone = lambda self: setattr(self, "lg", [])
_old_wait_lg = Asm.wait_lg
def _wait_lg(self, tag=None):
    if tag is not None and tag not in self.lg: return
    _old_wait_lg(self, tag)
Asm.wait_lg = _wait_lg

def features(a, P, EP, EM, FP, FM, T, VMASK, hook1=None, hook2=None):
    SL = S_L2E
    mx, mn, t0, t1 = T, T + 1, T + 2, T + 3
    a(f"v_max3_f32 v{mx}, v{P}, v{P+1}, v{P+2}")
    a(f"v_min3_f32 v{mn}, v{P}, v{P+1}, v{P+2}")
    for i in range(3, 15, 2):
        a(f"v_max3_f32 v{mx}, v{mx}, v{P+i}, v{P+i+1}")
        a(f"v_min3_f32 v{mn}, v{mn}, v{P+i}, v{P+i+1}")
    a(f"v_max_f32 v{mx}, v{mx}, v{P+15}")
    a(f"v_min_f32 v{mn}, v{mn}, v{P+15}")
    a(f"v_mov_b32 v{t0}, v{mx}"); a(f"v_mov_b32 v{t1}, v{mn}")
    a(f"v_permlane32_swap_b32 v{mx}, v{t0}"); a(f"v_permlane32_swap_b32 v{mn}, v{t1}")
    a(f"v_max_f32 v{mx}, v{mx}, v{t0}"); a(f"v_min_f32 v{mn}, v{mn}, v{t1}")
    a(f"v_mul_f32 v{mx}, s{SL}, v{mx}"); a(f"v_mul_f32 v{mn}, s{SL}, v{mn}")
    for i in range(16):
        a(f"v_fma_f32 v{EP+i}, v{P+i}, s{SL}, -v{mx}")
        a(f"v_fma_f32 v{EM+i}, -v{P+i}, s{SL}, v{mn}")
    if hook1: hook1()
    for i in range(16):
        a(f"v_exp_f32 v{EP+i}, v{EP+i}"); a(f"v_exp_f32 v{EM+i}, v{EM+i}")
    a(f"v_add_f32 v{t0}, v{EP+12}, v{EP+13}"); a(f"v_add_f32 v{t1}, v{EM+12}, v{EM+13}")
    a(f"v_add_f32 v{mx}, v{EP}, v{EP+1}"); a(f"v_add_f32 v{mn}, v{EM}, v{EM+1}")
    a(f"v_add_f32 v{t0}, v{t0}, v{EP+14}"); a(f"v_add_f32 v{t1}, v{t1}, v{EM+14}")
    for i in range(2, 12):
        a(f"v_add_f32 v{mx}, v{mx}, v{EP+i}"); a(f"v_add_f32 v{mn}, v{mn}, v{EM+i}")
    a(f"v_add_f32 v{t0}, v{t0}, v{EP+15}"); a(f"v_add_f32 v{t1}, v{t1}, v{EM+15}")
    a(f"v_fma_f32 v{mx}, v{t0}, v{VMASK}, v{mx}"); a(f"v_fma_f32 v{mn}, v{t1}, v{VMASK}, v{mn}")
    a(f"v_mov_b32 v{t0}, v{mx}"); a(f"v_mov_b32 v{t1}, v{mn}")
    a(f"v_permlane32_swap_b32 v{mx}, v{t0}"); a(f"v_permlane32_swap_b32 v{mn}, v{t1}")
    a(f"v_add_f32 v{mx}, v{mx}, v{t0}"); a(f"v_add_f32 v{mn}, v{mn}, v{t1}")
    a(f"v_rcp_f32 v{mx}, v{mx}"); a(f"v_rcp_f32 v{mn}, v{mn}")
    for i in range(16):
        a(f"v_mul_f32 v{EP+i}, v{EP+i}, v{mx}"); a(f"v_mul_f32 v{EM+i}, v{EM+i}, v{mn}")
    for i in range(8):
        a(f"v_cvt_pk_bf16_f32 v{FP+i}, v{EP+2*i}, v{EP+2*i+1}")
        a(f"v_cvt_pk_bf16_f32 v{FM+i}, v{EM+2*i}, v{EM+2*i+1}")
    if hook2: hook2()

def publish(a, stage):
    a.wait_vm()
    a(f"s_lshl_b32 s60, s{S_ID}, 7")
    a(f"s_lshl_b32 s61, s{S_W4}, 2")
    a("s_add_u32 s60, s60, s61")
    a(f"s_add_u32 s60, s60, {WS_FL + stage * 32768}")
    a("v_mov_b32 v12, 0")
    a(f"v_mov_b32 v13, s{S_TAG}")
    a("s_mov_b64 exec, 1")
    a.vmem(f"buffer_store_dword v13, v12, s[16:19], s60 offen{SC}")
    a("s_mov_b64 exec, -1")

def poll(a, stage, vaddr, T, nw, lanes, sleep=1):
    L = a.newlabel("poll"); D = a.newlabel("pdone")
    a(f"s_mov_b32 s60, {WS_FL + stage * 32768}")
    a("s_mov_b32 s61, 400000")
    a(f"s_mov_b64 exec, {hex((1 << lanes) - 1)}" if lanes < 32 else "s_mov_b32 exec_hi, 0")
    a.label(L)
    op = {1: "dword", 2: "dwordx2", 4: "dwordx4"}[nw]
    a(f"buffer_load_{op} {vr(T,nw)}, v{vaddr}, s[16:19], s60 offen{SC}")
    a("s_waitcnt vmcnt(0)")
    if nw == 1:
        a(f"v_cmp_ne_u32 vcc, s{S_TAG}, v{T}")
    else:
        for i in range(nw): a(f"v_xor_b32 v{T+i}, s{S_TAG}, v{T+i}")
        if nw == 4: a(f"v_or3_b32 v{T}, v{T}, v{T+2}, v{T+3}")
        a(f"v_or_b32 v{T}, v{T}, v{T+1}")
        a(f"v_cmp_ne_u32 vcc, 0, v{T}")
    a("s_sub_u32 s61, s61, 1")
    a("s_cselect_b64 vcc, 0, vcc")
    a("s_cmp_eq_u64 vcc, 0")
    a(f"s_cbranch_scc1 {D}")
    if sleep: a(f"s_sleep {sleep}")
    a(f"s_branch {L}")
    a.label(D)
    a("s_mov_b64 exec, -1")
    a.vm = []

def arrive(a, c):
    a("s_mov_b64 exec, 1")
    a.ds(f"ds_add_u32 v5, v6 offset:{c}")
    a("s_mov_b64 exec, -1")
def lwait(a, c, target, sleep=0):
    L = a.newlabel("lw"); D = a.newlabel("lwd")
    a("s_mov_b32 s61, 4000000")
    a.label(L)
    a(f"ds_read_b32 v12, v5 offset:{c}")
    a("s_waitcnt lgkmcnt(0)")
    a("v_readfirstlane_b32 s60, v12")
    a("s_sub_u32 s61, s61, 1")
    a(f"s_cbranch_scc1 {D}")
    a(f"s_cmp_ge_u32 s60, {target}")
    a(f"s_cbranch_scc1 {D}")
    if sleep: a(f"s_sleep {sleep}")
    a(f"s_branch {L}")
    a.label(D)
    a.lg = []

def kernel():
    a = Asm()
    END = "L_end"
    a("s_cmp_ge_u32 s2, 256")
    a(f"s_cbranch_scc1 {END}")
    if STAMPS: a("s_memrealtime s[90:91]")
    a("s_load_dwordx16 s[32:47], s[0:1], 0")
    a("s_load_dwordx8 s[48:55], s[0:1], 64")
    a("s_load_dwordx2 s[56:57], s[0:1], 96")
    a("s_getpc_b64 s[92:93]")
    a("v_lshrrev_b32 v1, 6, v0")
    a("v_and_b32 v0, 63, v0")
    a(f"v_readfirstlane_b32 s{S_WAVE}, v1")
    a(f"""
    s_and_b32 s3, s2, 7
    s_lshr_b32 s27, s2, 3
    s_lshr_b32 s61, s3, 1
    s_and_b32 s62, s3, 1
    s_lshl_b32 s{S_TB}, s61, 2
    s_lshr_b32 s63, s27, 3
    s_add_u32 s{S_TB}, s{S_TB}, s63
    s_lshl_b32 s{S_H}, s62, 3
    s_and_b32 s63, s27, 7
    s_add_u32 s{S_H}, s{S_H}, s63
    s_and_b32 s{S_W4}, s{S_WAVE}, 3
    s_lshr_b32 s{S_TI}, s{S_W4}, 1
    s_and_b32 s{S_CI}, s{S_W4}, 1
    s_lshl_b32 s{S_TT}, s{S_TB}, 2
    s_add_u32 s{S_TT}, s{S_TT}, s{S_W4}
    s_lshl_b32 s{S_ID}, s{S_TB}, 4
    s_add_u32 s{S_ID}, s{S_ID}, s{S_H}
    s_mov_b32 s{S_JOB}, 0
    s_cmp_eq_u32 s{S_H}, 0
    s_cselect_b32 s{S_JOB}, 1, s{S_JOB}
    s_cmp_eq_u32 s{S_H}, 15
    s_cselect_b32 s{S_JOB}, 2, s{S_JOB}
    v_lshlrev_b32 v2, 4, v0
    v_and_b32 v3, 31, v0
    v_lshrrev_b32 v4, 5, v0
    v_mov_b32 v5, {L_CNT}
    v_mov_b32 v6, 1
    s_mov_b32 s{S_L2E}, {f32(LOG2E)}
    ; slice DMA lane geometry: row = l/4 (v8), chunk byte = min(16*(l%4), 40) (v9)
    v_lshrrev_b32 v8, 2, v0
    v_and_b32 v9, 3, v0
    v_lshlrev_b32 v9, 4, v9
    v_min_u32 v9, 40, v9
    s_mul_i32 s76, s{S_H}, 56
    s_mul_i32 s77, s{S_W4}, 7168
    """)
    if STAMPS: a(f"v_mov_b32 v{V_ST}, 0")
    a(f"s_cmp_ge_u32 s{S_WAVE}, 4")
    a("s_cbranch_scc1 L_g1")
    def tagload():
        if STAMPS: a(f"v_writelane_b32 v{V_ST}, s90, 0")
        srd(a, 16, P_WS, WS_SIZE)
        a(f"s_add_u32 s64, s{P_WS}, {WS_TAG}")
        a(f"s_addc_u32 s65, s{P_WS+1}, 0")
        a(f"s_load_dword s{S_TAG}, s[64:65], 0")
    def tagfix():
        a("s_waitcnt lgkmcnt(0)")
        a(f"s_add_u32 s{S_TAG}, s{S_TAG}, 0x9e3779b9")
        a.lg = []
    def phi_frags(WP, t0, t1):
        a(f"""
        v_bfe_u32 v{t0}, v0, 2, 2
        v_lshl_add_u32 v{t0}, v4, 2, v{t0}
        v_lshlrev_b32 v{t0}, 6, v{t0}
        v_add_u32 v{t0}, v{t0}, v7
        v_add_u32 v{t0}, {L_PHI}, v{t0}
        """)
        for m in range(2):
            for pos in range(2):
                a.ds(f"ds_read_b64_tr_b16 {vr(WP + 4 * m + 2 * pos, 2)}, v{t0} offset:{(16 * m + 8 * pos) * 64}")
    def regions():
        a(f"""
        s_cmp_eq_u32 s{S_JOB}, 0
        s_cselect_b32 s72, {slot(4)}, {slot(0)}
        s_cselect_b32 s74, {slot(0)}, {slot(1)}
        s_cselect_b32 s75, {slot(2)}, {slot(0)}
        s_add_u32 s73, s74, {SLOT}
        """)
    def dma(mat, i, region_s, tag, va, vq):
        a(f"s_add_u32 s62, s{region_s}, s77")
        a(f"s_add_u32 m0, s62, {i * 1024}")
        if mat == 3:
            a(f"s_add_u32 s62, s67, {16 * i * 896}")
            a.vmem(f"buffer_load_dwordx4 {vq}, s[8:11], s62 offen lds", tag)
        else:
            a(f"s_add_u32 s62, s66, {mat * 896 + 16 * i * 2688}")
            a.vmem(f"buffer_load_dwordx4 {va}, s[12:15], s62 offen lds", tag)
    def quadoff():
        a("""
        v_bfe_u32 v7, v0, 4, 1
        v_and_b32 v12, 3, v0
        v_lshl_add_u32 v7, v7, 2, v12
        v_cmp_lt_u32 vcc, 5, v7
        v_xor_b32 v12, 1, v7
        v_cndmask_b32 v7, v7, v12, vcc
        v_lshlrev_b32 v7, 3, v7
        """)

    a("v_mul_u32_u24 v10, 2688, v8")
    a("v_add_u32 v10, v10, v9")
    a("v_mul_u32_u24 v11, 56, v8")
    a("v_add_u32 v11, v11, v9")
    a("v_mul_u32_u24 v16, 896, v8")
    a("v_add_u32 v16, v16, v9")
    a(f"s_mul_i32 s66, s{S_W4}, {112 * 2688}")
    a("s_add_u32 s66, s66, s76")
    a(f"s_mul_i32 s67, s{S_W4}, {112 * 896}")
    a("s_add_u32 s67, s67, s76")
    regions()
    a("s_waitcnt lgkmcnt(0)")
    srd(a, 12, P_WQKV, 448 * 2688)
    a(f"s_cmp_eq_u32 s{S_JOB}, 0")
    a("s_cbranch_scc0 L_g0_job")
    for i in range(7): dma(1, i, 72, None, "v10", "v16")
    a("s_branch L_g0_s1")
    a.label("L_g0_job")
    a(f"s_cmp_eq_u32 s{S_JOB}, 1")
    a(f"s_cselect_b32 s8, s{P_WK}, s{P_WV}")
    a(f"s_cselect_b32 s9, s{P_WK + 1}, s{P_WV + 1}")
    a(f"s_mov_b32 s10, {448 * 56}")
    a("s_mov_b32 s11, 0x00020000")
    a(f"s_mul_i32 s65, s{S_W4}, {112 * 56}")
    for i in range(7):
        a(f"s_add_u32 m0, s77, {slot(4) + i * 1024}")
        a(f"s_add_u32 s62, s65, {16 * i * 56}")
        a("buffer_load_dwordx4 v11, s[8:11], s62 offen lds")
    a.label("L_g0_s1")
    tagload()
    if OPT["codepf"]:
        a(f"""
        s_lshl_b32 s60, s27, 2
        s_add_u32 s60, s60, s{S_W4}
        s_lshl_b32 s60, s60, 8
        v_lshlrev_b32 v12, 7, v0
        v_add_u32 v12, s60, v12
        v_min_u32 v12, CODE_LAST, v12
        s_mov_b64 exec, 3
        global_load_dword v14, v12, s[92:93]
        s_mov_b64 exec, -1
        """)
    srd(a, 20, P_GATE, 896)
    a(f"s_mul_i32 s64, s{S_W4}, 224")
    a("v_lshlrev_b32 v12, 1, v0")
    a("buffer_load_ushort v18, v12, s[20:23], s64 offen")
    a("buffer_load_ushort v20, v12, s[20:23], s64 offen offset:128")
    a(f"s_cmp_ge_u32 s{S_W4}, 2")
    a("s_cbranch_scc1 L_g0_nophi")
    srd(a, 20, P_WPHI, 16 * 1568)
    a(f"s_mul_i32 s65, s{S_H}, 1568")
    a(f"s_mul_i32 s62, s{S_W4}, 896")
    a("s_add_u32 s62, s62, s65")
    a(f"s_lshl_b32 s63, s{S_W4}, 10")
    a(f"s_add_u32 m0, s63, {L_PHI}")
    a("buffer_load_dwordx4 v11, s[20:23], s62 offen lds")
    a.label("L_g0_nophi")
    if OPT["touch"]:
        a(f"""
        v_and_b32 v12, 3, v0
        v_lshlrev_b32 v12, 7, v12
        s_mul_i32 s60, s27, 14
        v_add_u32 v13, s60, v8
        s_lshr_b32 s61, s{S_H}, 3
        s_mul_i32 s61, s61, 384
        s_mov_b32 s22, {448*2688}
        s_mov_b32 s62, 2688
        s_cmp_eq_u32 s{S_W4}, 3
        s_cselect_b32 s20, s{P_WQ}, s{P_WQKV}
        s_cselect_b32 s21, s{P_WQ+1}, s{P_WQKV+1}
        s_cselect_b32 s22, {448*896}, s22
        s_cselect_b32 s62, 896, s62
        s_cselect_b32 s63, 0, s{S_W4}
        s_mov_b32 s23, 0x00020000
        s_mul_i32 s63, s63, 896
        s_add_u32 s61, s61, s63
        v_mul_lo_u32 v13, v13, s62
        v_add_u32 v13, v13, v12
        s_cmp_eq_u32 s{S_W4}, 1
        s_cbranch_scc1 L_g0_notouch
        s_mov_b32 exec_hi, 0x00ffffff
        buffer_load_dword v14, v13, s[20:23], s61 offen
        s_mov_b32 exec_hi, -1
        L_g0_notouch:
        """)
    srd(a, 8, P_WQ, 448 * 896)
    Q, O, SB, KF, VF = 16, 48, 112, 176, 208
    IDX, GATE, VMASK, PA, M, T = 240, 241, 242, 243, 244, 248
    K0 = 252 - 8 + 8
    KA, WP, ID, FP, FM = Q + 8, Q + 16, Q + 24, SB + 48, SB + 56
    K0 = O + 56
    quadoff()
    a("v_mov_b32 v19, 0")
    a("v_mov_b32 v21, 0")
    a(f"v_mov_b32 v{IDX}, 0xdddddddd")
    a(f"v_sub_u32 v{VMASK}, 1, v4")
    a(f"v_cvt_f32_u32 v{VMASK}, v{VMASK}")
    a("""
    v_and_b32 v12, 1, v0
    v_lshlrev_b32 v12, 4, v12
    v_mov_b32 v13, 0x3f80
    v_lshlrev_b32 v12, v12, v13
    v_lshlrev_b32 v13, 2, v4
    v_sub_u32 v13, v3, v13
    v_lshrrev_b32 v13, 1, v13
    """)
    for n, b in enumerate((0, 1, 4, 5, 8, 9, 12, 13)):
        a(f"v_cmp_eq_u32 vcc, {b}, v13")
        a(f"v_cndmask_b32 v{ID+n}, 0, v12, vcc")
    a(f"""
    v_lshrrev_b32 v{PA}, 1, v3
    v_lshlrev_b32 v{PA}, 4, v{PA}
    v_and_b32 v12, 1, v0
    v_mul_u32_u24 v12, 15, v12
    v_add_u32 v{PA}, v{PA}, v12
    v_lshlrev_b32 v{PA}, 7, v{PA}
    """)
    for i in range(56): a(f"v_mov_b32 v{O+i}, 0")
    tagfix()
    a("s_waitcnt vmcnt(0)")
    stamp(a, 12)
    a("s_barrier")
    a(f"s_cmp_eq_u32 s{S_JOB}, 0")
    a("s_cbranch_scc1 L_g0_b2")
    for i in range(7): dma(1, i, 72, None, "v10", "v16")
    a("s_waitcnt vmcnt(0)")
    a("s_barrier")
    a.label("L_g0_b2")
    for i in range(7): dma(3, i, 74, None, "v10", "v16")
    phi_frags(WP, T, T + 1)
    a("s_add_u32 s64, s74, s77")
    a("v_lshl_add_u32 v13, v0, 6, s64")
    a(f"s_lshl_b32 s64, s{S_W4}, 11")
    a(f"s_add_u32 s64, s64, {L_HK}")
    a("v_add_u32 v14, s64, v2")
    a(f"s_lshl_b32 s64, s{S_W4}, 12")
    a(f"s_add_u32 s64, s64, {L_HP}")
    a("v_add_u32 v17, s64, v2")
    a("s_waitcnt vmcnt(0)")
    a.ds("ds_write_b64 v13, v[18:19] offset:48")
    a("s_mov_b32 exec_hi, 0x0000ffff")
    a.ds("ds_write_b64 v13, v[20:21] offset:4144")
    a("s_mov_b32 exec_hi, -1")
    a.wait_lg()
    a("s_mov_b32 exec_lo, 0")
    a(f"v_mov_b32 v{WP+6}, 0"); a(f"v_mov_b32 v{WP+7}, 0")
    a("s_mov_b32 exec_lo, -1")
    stamp(a, 14)
    a("s_barrier")
    stamp(a, 1)
    a.ds(f"ds_read_b128 {vr(KA,4)}, v14")
    a.ds(f"ds_read_b128 {vr(KA+4,4)}, v14 offset:1024")
    a.wait_lg()
    mm2(a, SB, WP, KA)
    a(f"s_lshl_b32 s{S_KVB}, s{S_W4}, 16")
    a(f"s_add_u32 s{S_KVB}, s{S_KVB}, {WS_KV}")
    def kv_prologue():
        for i in range(4):
            a(f"s_add_u32 s64, s{S_KVB}, {i * 4096}")
            a.vmem(f"buffer_load_dwordx4 {vr(KF+8*i,4)}, v2, s[16:19], s64 offen{SC}", f"p{i}")
            a.vmem(f"buffer_load_dwordx4 {vr(KF+8*i+4,4)}, v2, s[16:19], s64 offen offset:1024{SC}", f"p{i}")
            if i < 3:
                a.vmem(f"buffer_load_dwordx4 {vr(VF+8*i,4)}, v2, s[16:19], s64 offen offset:2048{SC}", f"p{i}")
                a.vmem(f"buffer_load_dwordx4 {vr(VF+8*i+4,4)}, v2, s[16:19], s64 offen offset:3072{SC}", f"p{i}")
    def kv_first():
        a.vm = []
        a(f"s_mov_b32 s64, {WS_KV}")
        a.vmem(f"buffer_load_dwordx4 {vr(K0,4)}, v2, s[16:19], s64 offen{SC}", "k0")
        a.vmem(f"buffer_load_dwordx4 {vr(K0+4,4)}, v2, s[16:19], s64 offen offset:1024{SC}", "k0")
        kv_prologue()
    def h1():
        a(f"s_mov_b32 s60, {WS_FL + ST_KV * 32768}")
        a("s_mov_b32 exec_hi, 0")
        a(f"buffer_load_dwordx4 {vr(M,4)}, v{PA}, s[16:19], s60 offen{SC}")
        a("s_mov_b32 exec_hi, -1")
    def h2():
        a("s_waitcnt vmcnt(0)")
        for i in range(4): a(f"v_xor_b32 v{M+i}, s{S_TAG}, v{M+i}")
        a(f"v_or3_b32 v{M}, v{M}, v{M+2}, v{M+3}")
        a(f"v_or_b32 v{M}, v{M}, v{M+1}")
        a(f"v_cmp_ne_u32 vcc, 0, v{M}")
        a("s_mov_b32 s69, vcc_lo")
    features(a, SB, SB + 16, SB + 32, FP, FM, T, VMASK, h1, h2)
    mm2(a, SB, FP, ID)
    mm2(a, SB + 16, FM, ID)
    a("s_cmp_lg_u32 s69, 0")
    a("s_cbranch_scc1 L_g0_late1")
    kv_first()
    a.label("L_g0_late1")
    pack16(a, SB + 32, SB)
    pack16(a, SB + 40, SB + 16)
    for i in range(4): a.ds(f"ds_write_b128 v17, {vr(SB+32+4*i,4)} offset:{i*1024}")
    stamp(a, 3)
    a("s_cmp_eq_u32 s69, 0")
    a("s_cbranch_scc1 L_g0_late2")
    poll(a, ST_KV, PA, T, 4, 32, 0)
    kv_first()
    a.label("L_g0_late2")
    a.wait_lg()
    arrive(a, C_KV)
    stamp(a, 4)
    a(f"s_mov_b32 s{S_RETRY}, 0")
    a(f"s_mov_b32 s{S_OTGT}, 4")
    lwait(a, C_Q, 4)
    for ql in range(4):
        a(f"s_add_u32 s64, s{S_W4}, {ql}")
        a("s_and_b32 s64, s64, 3")
        a("s_lshl_b32 s64, s64, 11")
        a(f"s_add_u32 s64, s64, {L_HQ}")
        a("v_add_u32 v12, s64, v2")
        a.ds(f"ds_read_b128 {vr(Q+8*ql,4)}, v12")
        a.ds(f"ds_read_b128 {vr(Q+8*ql+4,4)}, v12 offset:1024")
    a(f"s_lshl_b32 s64, s{S_W4}, 8")
    a(f"s_add_u32 s64, s64, {L_HG}")
    a("v_lshl_add_u32 v12, v0, 2, s64")
    a.ds(f"ds_read_b32 v{GATE}, v12")
    a.wait_lg()
    arrive(a, C_QR)
    a.wait_vm("k0")
    stamp(a, 13)
    for ql in range(4): mm2(a, SB + 16 * ql, K0, Q + 8 * ql)
    for ql in range(4):
        S = SB + 16 * ql
        a(f"v_max3_f32 v{M+ql}, v{S}, v{S+1}, v{S+2}")
        for i in range(3, 15, 2): a(f"v_max3_f32 v{M+ql}, v{M+ql}, v{S+i}, v{S+i+1}")
        a(f"v_max_f32 v{M+ql}, v{M+ql}, v{S+15}")
    for ql in range(4): a(f"v_mov_b32 v{T+ql}, v{M+ql}")
    for ql in range(4): a(f"v_permlane32_swap_b32 v{M+ql}, v{T+ql}")
    for ql in range(4): a(f"v_max_f32 v{M+ql}, v{M+ql}, v{T+ql}")
    a.label("L_start")
    for ql in range(4): a(f"v_cvt_pk_bf16_f32 v{T+ql}, v{M+ql}, v{M+ql}")
    for ql in range(4): a(f"v_lshlrev_b32 v{T+ql}, 16, v{T+ql}")
    for ql in range(4): a(f"v_sub_f32 v{M+ql}, v{M+ql}, v{T+ql}")
    a("s_mov_b32 exec_lo, 0")
    for ql in range(4): a(f"v_cvt_pk_bf16_f32 v{Q+8*ql+6}, -v{T+ql}, -v{M+ql}")
    a("s_mov_b32 exec_lo, -1")
    for i in range(56, 64): a(f"v_mov_b32 v{O+i}, 0")
    for i in range(8): a(f"v_mov_b32 v{SB+48+8+i}, 0")
    for i in range(4): a(f"v_mov_b32 v{VF+24+4+i}, 0")
    a("s_waitcnt vmcnt(10)")
    a.vm = []; a.lg = []
    stamp(a, 5)
    mm2(a, SB, KF, Q)
    a(f"s_mov_b32 s67, s{S_KVB}")
    a("s_mov_b32 s68, 4")
    a("s_nop 7")
    a("s_nop 3")
    a(".p2align 6")
    a.label("L_loop")
    for i in range(4):
        for q in range(4):
            nq = (q + 1) % 4; ni = (i + (q == 3)) % 4
            pq = (q - 1) % 4; pi = (i - (q == 0)) % 4
            S = SB + 16 * q; N = SB + 16 * nq
            extra = {}; wide = set()
            if q == 2:
                extra = {1: f"s_add_u32 s64, s67, {(i+4)*4096}", 5: f"buffer_load_dwordx4 {vr(KF+8*i,4)}, v2, s[16:19], s64 offen{SC}",
                         9: f"buffer_load_dwordx4 {vr(KF+8*i+4,4)}, v2, s[16:19], s64 offen offset:1024{SC}", 14: "s_waitcnt vmcnt(10)"}; wide = {15}
            if q == 0:
                extra = {1: f"s_add_u32 s64, s67, {(i+3)*4096}", 9: f"buffer_load_dwordx4 {vr(VF+8*pi,4)}, v2, s[16:19], s64 offen offset:2048{SC}",
                         13: f"buffer_load_dwordx4 {vr(VF+8*pi+4,4)}, v2, s[16:19], s64 offen offset:3072{SC}"}
            if i == 3 and q == 3: extra = {1: "s_add_u32 s67, s67, 16384", 4: "s_sub_u32 s68, s68, 1", 5: "s_cmp_lg_u32 s68, 0"}
            def ex(lo, hi):
                for e in range(lo, hi):
                    a(f"v_exp_f32{'_e64' if e in wide else ''} v{S+e}, v{S+e}")
                    if e in extra: a(extra[e])
            a(f"v_mfma_f32_32x32x16_bf16 {vr(N,16)}, {vr(KF+8*ni,4)}, {vr(Q+8*nq,4)}, 0"); ex(0, 4)
            a(f"v_mfma_f32_32x32x16_bf16 {vr(N,16)}, {vr(KF+8*ni+4,4)}, {vr(Q+8*nq+4,4)}, {vr(N,16)}"); ex(4, 8)
            a(f"v_smfmac_f32_32x32x32_bf16 {vr(O+16*pq,16)}, {vr(VF+8*pi+4,4)}, {vr(SB+16*pq+8,8)}, v{IDX}"); ex(8, 12)
            a(f"v_smfmac_f32_32x32x32_bf16 {vr(O+16*q,16)}, {vr(VF+8*i,4)}, {vr(S,8)}, v{IDX}"); ex(12, 16)
    a("s_cbranch_scc1 L_loop")
    a(f"v_smfmac_f32_32x32x32_bf16 {vr(O+48,16)}, {vr(VF+24+4,4)}, {vr(SB+48+8,8)}, v{IDX}")
    stamp(a, 6)
    arrive(a, C_E)
    lwait(a, C_W, 8)
    a(f"s_mov_b32 s72, {f32(2.0**60)}")
    for ql in range(1, 4):
        a(f"s_add_u32 s64, s{S_W4}, {ql}")
        a("s_and_b32 s64, s64, 3")
        a("s_mul_i32 s64, s64, 12288")
        a(f"s_add_u32 s64, s64, {L_ORED + (ql - 1) * 4096}")
        a(f"v_add_u32 v{T+1}, s64, v2")
        for i in range(4): a.ds(f"ds_write_b128 v{T+1}, {vr(O+16*ql+4*i,4)} offset:{i*1024}")
    a(f"v_add_f32 v{T}, v{O+12}, v{O+16+12}")
    a(f"v_add_f32 v{T+2}, v{O+32+12}, v{O+48+12}")
    a(f"v_add_f32 v{T}, v{T}, v{T+2}")
    a(f"v_cmp_nge_f32 vcc, s72, v{T}")
    a("s_cmp_lg_u32 vcc_hi, 0")
    a("s_cselect_b32 s73, 1, 0")
    a(f"v_mov_b32 v{T}, s73")
    a(f"s_lshl_b32 s64, s{S_W4}, 2")
    a(f"s_add_u32 s64, s64, {L_OVF}")
    a(f"v_mov_b32 v{T+1}, s64")
    a.ds(f"ds_write_b32 v{T+1}, v{T}")
    a.wait_lg()
    arrive(a, C_O)
    lwait(a, C_O, f"s{S_OTGT}")
    a.ds(f"ds_read_b128 {vr(M,4)}, v5 offset:32", "fl")
    a(f"s_mul_i32 s64, s{S_W4}, 12288")
    a(f"s_add_u32 s64, s64, {L_ORED}")
    a(f"v_add_u32 v{T+1}, s64, v2")
    for i in range(12): a.ds(f"ds_read_b128 {vr(SB+4*i,4)}, v{T+1} offset:{i*1024}")
    a.wait_lg("fl")
    a(f"v_or3_b32 v{M}, v{M}, v{M+1}, v{M+2}")
    a(f"v_or_b32 v{M}, v{M}, v{M+3}")
    a(f"v_readfirstlane_b32 s73, v{M}")
    a(f"s_andn2_b32 s73, s73, s{S_RETRY}")
    a("s_cbranch_scc1 L_redo")
    a.wait_lg()
    for i in range(16):
        a(f"v_add_f32 v{O+i}, v{O+i}, v{SB+i}")
        a(f"v_add_f32 v{SB+16+i}, v{SB+16+i}, v{SB+32+i}")
    for i in range(16): a(f"v_add_f32 v{O+i}, v{O+i}, v{SB+16+i}")
    a(f"v_mov_b32 v{T}, v{O+12}")
    a(f"v_mov_b32 v{T+1}, v{O+12}")
    a(f"v_permlane32_swap_b32 v{T}, v{T+1}")
    a(f"v_rcp_f32 v{T+1}, v{T+1}")
    a(f"v_sub_f32 v{T}, 1.0, v{GATE}")
    a(f"v_mul_f32 v{T}, v{T}, v{T+1}")
    for i in range(16): a(f"v_mul_f32 v{O+i}, v{O+i}, v{T}")
    pack16(a, SB, O)
    a("s_mov_b32 exec_lo, 0")
    a(f"v_mov_b32 v{SB+6}, 0"); a(f"v_mov_b32 v{SB+7}, 0")
    a("s_mov_b32 exec_lo, -1")
    a(f"s_lshl_b32 s64, s{S_TT}, 4")
    a(f"s_add_u32 s64, s64, s{S_H}")
    a("s_lshl_b32 s64, s64, 11")
    a(f"s_add_u32 s64, s64, {WS_O + 0x200000}")
    a(f"buffer_store_dwordx4 {vr(SB,4)}, v2, s[16:19], s64 offen{SC}")
    a(f"buffer_store_dwordx4 {vr(SB+4,4)}, v2, s[16:19], s64 offen offset:1024{SC}")
    stamp(a, 7)
    publish(a, ST_OB)
    stamp(a, 8)
    a("s_branch L_fin")
    a.label("L_redo")
    a("s_waitcnt vmcnt(0) lgkmcnt(0)")
    a(f"s_mov_b32 s{S_RETRY}, 1")
    a(f"s_mov_b32 s{S_OTGT}, 8")
    a("s_mov_b32 exec_lo, 0")
    for ql in range(4): a(f"v_mov_b32 v{Q+8*ql+6}, 0")
    a("s_mov_b32 exec_lo, -1")
    for ql in range(4): a(f"v_mov_b32 v{M+ql}, 0xff800000")
    a(f"s_mov_b32 s67, s{S_KVB}")
    a("s_mov_b32 s68, 16")
    a.label("L_maxloop")
    a(f"buffer_load_dwordx4 {vr(KF,4)}, v2, s[16:19], s67 offen{SC}")
    a(f"buffer_load_dwordx4 {vr(KF+4,4)}, v2, s[16:19], s67 offen offset:1024{SC}")
    a("s_waitcnt vmcnt(0)")
    for ql in range(4): mm2(a, SB + 16 * ql, KF, Q + 8 * ql)
    for ql in range(4):
        S = SB + 16 * ql
        for i in range(0, 16, 2): a(f"v_max3_f32 v{M+ql}, v{M+ql}, v{S+i}, v{S+i+1}")
    a("s_add_u32 s67, s67, 4096")
    a("s_sub_u32 s68, s68, 1")
    a("s_cmp_lg_u32 s68, 0")
    a("s_cbranch_scc1 L_maxloop")
    for ql in range(4): xhalf(a, "v_max_f32", M + ql, T + ql)
    LMX = L_ORED + 49152
    a("v_lshlrev_b32 v14, 2, v0")
    for ql in range(4):
        a(f"s_add_u32 s64, s{S_W4}, {ql}")
        a("s_and_b32 s64, s64, 3")
        a("s_lshl_b32 s64, s64, 10")
        a(f"s_add_u32 s64, s64, {LMX}")
        a(f"v_add_u32 v{SB+ql}, s64, v14")
        a(f"s_lshl_b32 s65, s{S_W4}, 8")
        a(f"v_add_u32 v13, s65, v{SB+ql}")
        a(f"ds_write_b32 v13, v{M+ql}")
    a("s_waitcnt lgkmcnt(0)")
    arrive(a, C_R)
    lwait(a, C_R, 4)
    for ql in range(4):
        for w in range(4): a(f"ds_read_b32 v{SB+16+4*ql+w}, v{SB+ql} offset:{w*256}")
        a("s_waitcnt lgkmcnt(0)")
        a(f"v_max3_f32 v{M+ql}, v{SB+16+4*ql}, v{SB+16+4*ql+1}, v{SB+16+4*ql+2}")
        a(f"v_max_f32 v{M+ql}, v{M+ql}, v{SB+16+4*ql+3}")
    for i in range(56): a(f"v_mov_b32 v{O+i}, 0")
    kv_prologue()
    a("s_branch L_start")

    a.label("L_g1")
    a.vm = []; a.lg = []
    XF, WF, ACC, PK = 64, 176, 232, 24
    a(f"s_lshl_b32 s60, s{S_TT}, 5")
    a("s_mul_i32 s60, s60, 896")
    a(f"s_mul_i32 s61, s{S_W4}, {SLOT}")
    a("s_and_b32 s63, s27, 7")
    a("s_lshl_b32 s63, s63, 2")
    if not OPT["rot"]: a("s_mov_b32 s63, 0")
    a("s_waitcnt lgkmcnt(0)")
    srd(a, 4, P_X, 2048 * 896)
    a("s_mov_b32 exec_hi, 0x00ffffff")
    for g in range(8):
        a("s_mul_i32 s64, s63, 896")
        a("s_add_u32 s64, s64, s60")
        a("s_mul_i32 s65, s63, 912")
        a("s_add_u32 s65, s65, s61")
        for i in range(4):
            a(f"s_add_u32 m0, s65, {i * 912}")
            a(f"s_add_u32 s62, s64, {i * 896}")
            a.vmem("buffer_load_dwordx4 v2, s[4:7], s62 offen lds", "x")
        a("s_add_u32 s63, s63, 4")
        a("s_and_b32 s63, s63, 31")
    a("s_mov_b32 exec_hi, -1")
    tagload()
    srd(a, 12, P_WQKV, 448 * 2688)
    a("v_mov_b32 v12, 0")
    a("v_lshlrev_b32 v13, 2, v0")
    a(f"v_add_u32 v13, {L_CNT}, v13")
    a("ds_write_b32 v13, v12")
    quadoff()
    a(f"""
    v_mul_u32_u24 v10, 2688, v8
    v_add_u32 v10, v10, v9
    v_mul_u32_u24 v19, 912, v3
    v_lshl_add_u32 v19, v4, 4, v19
    v_add_u32 v19, s61, v19
    v_bfe_u32 v20, v0, 2, 2
    v_lshl_add_u32 v20, v4, 3, v20
    v_lshlrev_b32 v20, 6, v20
    v_add_u32 v20, v20, v7
    s_mul_i32 s66, s{S_W4}, {112 * 2688}
    s_add_u32 s66, s66, s76
    s_lshl_b32 s64, s{S_W4}, 11
    s_add_u32 s64, s64, {L_HK}
    v_add_u32 v22, s64, v2
    s_mov_b32 s71, {f32(QSCALE)}
    """)
    regions()
    tagfix()
    a.wait_vm("x")
    stamp(a, 12)
    for s in range(28):
        a.ds(f"ds_read_b128 {vr(XF + 4 * s, 4)}, v19 offset:{32 * s}")
        if s == 13: a.wait_lg()
    a.wait_lg()
    def rnd(region, swap, nxt=None):
        a(f"v_add_u32 v21, {region}, v20")
        AH = 5
        def rd(s):
            a.ds(f"ds_read_b64_tr_b16 {vr(WF + 4 * (s % 14), 2)}, v21 offset:{s * 1024}", f"r{s}")
            a.ds(f"ds_read_b64_tr_b16 {vr(WF + 4 * (s % 14) + 2, 2)}, v21 offset:{s * 1024 + 256}", f"r{s}")
        for s in range(AH): rd(s)
        for s in range(28):
            if s + AH < 28: rd(s + AH)
            a.wait_lg(f"r{s}")
            c = "0" if s == 0 else vr(ACC, 16)
            w = vr(WF + 4 * (s % 14), 4); x = vr(XF + 4 * s, 4)
            A, B = (x, w) if swap else (w, x)
            a(f"v_mfma_f32_32x32x16_bf16 {vr(ACC, 16)}, {A}, {B}, {c}")
            if nxt and s % 4 == 1: dma(nxt[0], s // 4, nxt[1], nxt[2], "v10", None)
    def vfix():
        a("s_mov_b32 exec_lo, 0x10000000"); a("s_mov_b32 exec_hi, 0x10000000")
        for i in range(8): a(f"v_mov_b32 v{PK + i}, 0x3f803f80")
        a("s_mov_b32 exec_lo, 0xe0000000"); a("s_mov_b32 exec_hi, 0xe0000000")
        for i in range(8): a(f"v_mov_b32 v{PK + i}, 0")
        a("s_mov_b64 exec, -1")
    stamp(a, 13)
    a("s_barrier")
    a(f"s_cmp_eq_u32 s{S_JOB}, 0")
    a("s_cbranch_scc1 L_g1_ka")
    a(f"""
    s_lshl_b32 s64, s{S_TB}, 1
    s_add_u32 s64, s64, s{S_JOB}
    s_sub_u32 s64, s64, 1
    s_lshl_b32 s64, s64, 2
    s_add_u32 s64, s64, s{S_W4}
    s_lshl_b32 s64, s64, 10
    s_add_u32 s64, s64, {WS_KVS}
    v_mov_b32 v36, 0
    v_mov_b32 v37, 0
    v_mov_b32 v38, 0
    v_mov_b32 v39, 0
    """)
    a(f"buffer_store_dwordx4 v[36:39], v2, s[16:19], s64 offen{SC}")
    a(f"s_lshl_b32 s70, s{S_TT}, 12")
    a(f"s_add_u32 s70, s70, {WS_KV}")
    a(f"s_cmp_eq_u32 s{S_JOB}, 2")
    a("s_cbranch_scc1 L_g1_vjob")
    a("""
    v_and_b32 v32, 0x33, v0
    v_bfe_u32 v23, v0, 2, 1
    v_lshl_add_u32 v32, v23, 3, v32
    v_bfe_u32 v23, v0, 3, 1
    v_lshl_add_u32 v32, v23, 2, v32
    v_lshlrev_b32 v32, 4, v32
    """)
    rnd(slot(4), False)
    pack16(a, PK, ACC)
    a("s_mov_b32 exec_lo, 0")
    a(f"v_mov_b32 v{PK + 6}, 0x3f803f80")
    a(f"v_mov_b32 v{PK + 7}, 0")
    a("s_mov_b32 exec_lo, -1")
    a(f"buffer_store_dwordx4 {vr(PK, 4)}, v32, s[16:19], s70 offen{SC}")
    a(f"buffer_store_dwordx4 {vr(PK + 4, 4)}, v32, s[16:19], s70 offen offset:1024{SC}")
    a("s_branch L_g1_jobend")
    a.label("L_g1_vjob")
    rnd(slot(4), True)
    pack16(a, PK, ACC)
    vfix()
    a(f"buffer_store_dwordx4 {vr(PK, 4)}, v2, s[16:19], s70 offen offset:2048{SC}")
    a(f"buffer_store_dwordx4 {vr(PK + 4, 4)}, v2, s[16:19], s70 offen offset:3072{SC}")
    a.label("L_g1_jobend")
    publish(a, ST_KV)
    stamp(a, 14)
    a("s_barrier")
    a.label("L_g1_ka")
    a.vm = []; a.lg = []
    rnd("s72", False)
    pack16(a, PK, ACC)
    a.ds(f"ds_write_b128 v22, {vr(PK,4)}")
    a.ds(f"ds_write_b128 v22, {vr(PK+4,4)} offset:1024")
    a.wait_lg()
    stamp(a, 15)
    a("s_barrier")
    rnd("s74", False)
    GATE = 18
    a(f"v_mul_f32 v{GATE}, {f32(-LOG2E)}, v{ACC + 12}")
    a(f"v_exp_f32 v{GATE}, v{GATE}")
    for i in range(16): a(f"v_mul_f32 v{ACC + i}, s71, v{ACC + i}")
    a(f"v_add_f32 v{GATE}, 1.0, v{GATE}")
    a(f"v_rcp_f32 v{GATE}, v{GATE}")
    pack16(a, PK, ACC)
    a(f"v_mov_b32 v23, v{GATE}")
    a("s_mov_b32 exec_lo, 0")
    a(f"v_mov_b32 v{PK + 6}, 0"); a(f"v_mov_b32 v{PK + 7}, 0")
    a("s_mov_b32 exec_lo, -1")
    a(f"v_permlane32_swap_b32 v23, v{GATE}")
    a.ds(f"ds_write_b128 v22, {vr(PK,4)} offset:8192")
    a.ds(f"ds_write_b128 v22, {vr(PK+4,4)} offset:9216")
    a(f"s_lshl_b32 s64, s{S_W4}, 8")
    a(f"s_add_u32 s64, s64, {L_HG}")
    a("v_lshl_add_u32 v23, v0, 2, s64")
    a.ds(f"ds_write_b32 v23, v{GATE}")
    a.wait_lg()
    arrive(a, C_Q)
    stamp(a, 16)
    lwait(a, C_KV, 4, 1)
    a("s_setprio 1")
    for i in range(7): dma(2, i, 73, "va", "v10", None)
    a.wait_vm("va")
    arrive(a, C_S)
    for i in range(7): dma(0, i, 75, "qa", "v10", None)
    lwait(a, C_S, 4, 1)
    rnd("s73", True)
    a.wait_vm("qa")
    arrive(a, C_S)
    pack16(a, PK, ACC)
    vfix()
    stamp(a, 17)
    lwait(a, C_S, 8, 1)
    rnd("s75", False)
    T, VMASK, PA3, PA5 = 40, 16, 17, 19
    FP, FM, WP, S0 = 44, 52, 32, 64
    ACC2 = 112
    WOB = 128
    QP = 176
    phi_frags(WP, T, T + 1)
    arrive(a, C_S)
    pack16(a, QP, ACC)
    stamp(a, 1)
    a(f"s_lshl_b32 s64, s{S_W4}, 12")
    a(f"s_add_u32 s64, s64, {L_HP}")
    a("v_add_u32 v12, s64, v2")
    for i in range(4): a.ds(f"ds_read_b128 {vr(FP+4*i,4)}, v12 offset:{i*1024}")
    a.wait_lg()
    a("s_mov_b32 exec_lo, 0")
    a(f"v_mov_b32 v{WP+6}, 0"); a(f"v_mov_b32 v{WP+7}, 0")
    a("s_mov_b32 exec_lo, -1")
    mm2(a, S0, FP, PK)
    mm2(a, S0 + 16, FM, PK)
    mm2(a, ACC, WP, QP)
    a(f"s_lshl_b32 s64, s{S_W4}, 13")
    a(f"s_add_u32 s64, s64, {L_KVR}")
    a("v_add_u32 v13, s64, v2")
    for i in range(8): a.ds(f"ds_write_b128 v13, {vr(S0+4*i,4)} offset:{i*1024}")
    a.wait_lg()
    arrive(a, C_KV)
    lwait(a, C_KV, 8, 1)
    a(f"s_lshl_b32 s64, s{S_W4}, 11")
    a(f"s_add_u32 s64, s64, {L_KVR}")
    a("v_add_u32 v12, s64, v2")
    for src in range(4):
        for i in range(2): a.ds(f"ds_read_b128 {vr(S0+8*src+4*i,4)}, v12 offset:{src*8192+i*1024}")
    a(f"s_lshl_b32 s64, s{S_H}, 13")
    a(f"s_lshl_b32 s65, s{S_W4}, 11")
    a("s_add_u32 s64, s64, s65")
    a(f"s_add_u32 s64, s64, {WS_KVS}")
    a("v_lshlrev_b32 v14, 2, v0")
    a.wait_lg()
    for i in range(0, 8, 2):
        a(f"v_pk_add_f32 {vr(S0+i,2)}, {vr(S0+i,2)}, {vr(S0+8+i,2)}")
        a(f"v_pk_add_f32 {vr(S0+16+i,2)}, {vr(S0+16+i,2)}, {vr(S0+24+i,2)}")
    for i in range(0, 8, 2): a(f"v_pk_add_f32 {vr(S0+i,2)}, {vr(S0+i,2)}, {vr(S0+16+i,2)}")
    for i in range(8): a.vmem(f"buffer_atomic_add_f32 v{S0+i}, v14, s[16:19], s64 offen offset:{i*256}")
    stamp(a, 2)
    a(f"v_sub_u32 v{VMASK}, 1, v4")
    a(f"v_cvt_f32_u32 v{VMASK}, v{VMASK}")
    features(a, ACC, S0 + 16, S0 + 32, FP, FM, T, VMASK)
    a("s_mov_b32 exec_lo, 0")
    for R in (FP, FM): a(f"v_mov_b32 v{R+6}, 0"); a(f"v_mov_b32 v{R+7}, 0")
    a("s_mov_b32 exec_lo, -1")
    publish(a, ST_SUM)
    stamp(a, 3)
    a(f"""
    s_cmp_ge_u32 s{S_H}, 7
    s_cselect_b32 s70, 1, 0
    s_mul_i32 s71, s70, 7
    s_sub_u32 s71, s{S_H}, s71
    s_min_u32 s71, s71, 6               ; lg
    v_and_b32 v12, 15, v0
    v_lshlrev_b32 v{PA3}, 4, v12
    v_add_u32 v{PA3}, s{S_H}, v{PA3}
    v_lshlrev_b32 v{PA3}, 7, v{PA3}
    s_lshl_b32 s60, s{S_TB}, 4
    v_add_u32 v{PA5}, s60, v12
    v_lshlrev_b32 v{PA5}, 7, v{PA5}
    s_lshl_b32 s60, s70, 3
    v_add_u32 v{PA5}, s60, v{PA5}
    v_lshrrev_b32 v12, 3, v0
    v_and_b32 v13, 7, v0
    v_bfe_u32 v14, v0, 4, 1
    v_lshlrev_b32 v14, 2, v14
    v_xor_b32 v13, v13, v14
    v_lshlrev_b32 v13, 4, v13
    v_mul_u32_u24 v10, 896, v12
    v_add_u32 v10, v10, v13
    v_bfe_u32 v12, v0, 2, 2
    v_lshl_add_u32 v11, v4, 2, v12
    v_lshlrev_b32 v11, 7, v11
    v_lshrrev_b32 v12, 1, v12
    v_xor_b32 v12, s{S_CI}, v12
    v_lshl_add_u32 v11, v12, 6, v11
    v_bfe_u32 v12, v0, 4, 1
    v_lshl_add_u32 v11, v12, 5, v11
    v_and_b32 v12, 3, v0
    v_lshl_add_u32 v11, v12, 3, v11
    s_mul_i32 s72, s{S_W4}, {112 * 896}
    s_lshl_b32 s73, s71, 7
    s_add_u32 s72, s72, s73
    s_mul_i32 s73, s{S_W4}, {112 * 128}
    """)
    srd(a, 8, P_WOB, 448 * 896)
    srd(a, 12, P_WOA, 448 * 896)
    lwait(a, C_S, 12, 1)
    lwait(a, C_QR, 4, 1)
    def wo_dma(sr, lbase):
        for i in range(15):
            a(f"s_add_u32 m0, s73, {lbase + i * 1024}")
            a(f"s_add_u32 s62, s72, {8 * i * 896}")
            if i == 14:
                a(f"s_cmp_lg_u32 s{S_W4}, 3")
                Lk = a.newlabel("wskip"); a(f"s_cbranch_scc1 {Lk}")
            a(f"buffer_load_dwordx4 v10, s[{sr}:{sr+3}], s62 offen lds")
            if i == 14: a.label(Lk)
            if i == 6: a("s_waitcnt vmcnt(0)")
        a("s_waitcnt vmcnt(0)")
    wo_dma(8, L_WB)
    arrive(a, C_W)
    wo_dma(12, L_WA)
    lwait(a, C_W, 4, 1)
    a(f"v_add_u32 v14, {L_WB}, v11")
    for k in range(32):
        for pos in range(2):
            a.ds(f"ds_read_b64_tr_b16 {vr(WOB+4*k+2*pos,2)}, v14 offset:{(28*(k//2) + 16*(k%2) + 8*pos) * 128}")
        if k % 4 == 3: a.wait_lg()
    arrive(a, C_W)
    stamp(a, 4)
    poll(a, ST_SUM, PA3, T, 4, 16, 2)
    stamp(a, 5)
    a(f"s_lshl_b32 s64, s{S_H}, 13")
    a(f"s_add_u32 s64, s64, {WS_KVS}")
    a(f"s_add_u32 s65, s64, 4096")
    a("v_lshlrev_b32 v14, 2, v0")
    for r in range(32):
        a(f"buffer_load_dword v{S0+r}, v14, s[16:19], s{64 + r // 16} offen offset:{(r%16)*256}{SC}")
    a("s_waitcnt vmcnt(0)")
    for i in range(16): a(f"v_cvt_pk_bf16_f32 v{S0+32+i}, v{S0+2*i}, v{S0+2*i+1}")
    for i in range(4):
        a(f"v_mfma_f32_32x32x16_bf16 {vr(ACC2,16)}, {vr(S0+32+4*i,4)}, {vr(FP+4*i,4)}, {'0' if i == 0 else vr(ACC2,16)}")
    a(f"v_mov_b32 v12, v{ACC2+12}")
    a(f"v_mov_b32 v13, v{ACC2+12}")
    a("v_permlane32_swap_b32 v12, v13")
    a(f"v_add_f32 v13, {f32(1e-6)}, v13")
    a("v_rcp_f32 v13, v13")
    a(f"v_mul_f32 v13, v13, v{GATE}")
    for i in range(16): a(f"v_mul_f32 v{ACC2+i}, v{ACC2+i}, v13")
    pack16(a, S0, ACC2)
    a("s_mov_b32 exec_lo, 0")
    a(f"v_mov_b32 v{S0+6}, 0"); a(f"v_mov_b32 v{S0+7}, 0")
    a("s_mov_b32 exec_lo, -1")
    a(f"s_lshl_b32 s64, s{S_TT}, 4")
    a(f"s_add_u32 s64, s64, s{S_H}")
    a("s_lshl_b32 s64, s64, 11")
    a(f"s_add_u32 s64, s64, {WS_O}")
    a(f"buffer_store_dwordx4 {vr(S0,4)}, v2, s[16:19], s64 offen{SC}")
    a(f"buffer_store_dwordx4 {vr(S0+4,4)}, v2, s[16:19], s64 offen offset:1024{SC}")
    publish(a, ST_OA)
    stamp(a, 6)
    a(f"s_cmp_ge_u32 s{S_H}, 14")
    a("s_cbranch_scc1 L_fin")
    a(f"s_lshl_b32 s74, s{S_TB}, 2")
    a("s_lshl_b32 s60, s70, 1")
    a("s_add_u32 s74, s74, s60")
    lwait(a, C_W, 8, 1)
    poll(a, ST_OA, PA5, T, 2, 16, 2)
    stamp(a, 7)
    a(f"s_add_u32 s64, s74, s{S_TI}")
    a("s_lshl_b32 s64, s64, 15")
    a(f"s_lshl_b32 s65, s{S_CI}, 13")
    a("s_add_u32 s75, s64, s65")
    a(f"s_add_u32 s75, s75, {WS_O}")
    a(f"s_lshl_b32 s76, s{S_W4}, 13")
    a(f"s_lshl_b32 s64, s{S_TI}, 14")
    a(f"s_add_u32 s64, s64, {L_OA}")
    a("v_add_u32 v13, s64, v2")
    OF, WFR = 64, 88
    for hf in range(2):
        a(f"s_add_u32 s64, s75, {hf * 16384}")
        a(f"s_add_u32 s66, s64, 4096")
        a(f"s_add_u32 m0, s76, {L_OA}")
        for n in range(4): a(f"buffer_load_dwordx4 v2, s[16:19], s64 offen offset:{n*1024}{SC} lds")
        a(f"s_add_u32 m0, s76, {L_OA + 4096}")
        for n in range(4): a(f"buffer_load_dwordx4 v2, s[16:19], s66 offen offset:{n*1024}{SC} lds")
        a("s_waitcnt vmcnt(0)")
        arrive(a, C_A)
        if hf == 0: lwait(a, C_E, 1, 4)
        lwait(a, C_A, 4 + 8 * hf)
        def rd(n):
            k = 16 * hf + n
            a.ds(f"ds_read_b128 {vr(OF+4*(n%6),4)}, v13 offset:{n*1024}", f"t{n}")
            for pos in range(2):
                a.ds(f"ds_read_b64_tr_b16 {vr(WFR+4*(n%6)+2*pos,2)}, v11 offset:{L_WA + (28*(k//2) + 16*(k%2) + 8*pos) * 128}", f"t{n}")
        for n in range(4): rd(n)
        for n in range(16):
            a.wait_lg(f"t{n}")
            a(f"v_mfma_f32_32x32x16_bf16 {vr(ACC2,16)}, {vr(WFR+4*(n%6),4)}, {vr(OF+4*(n%6),4)}, {'0' if hf == 0 and n == 0 else vr(ACC2,16)}")
            if n + 4 < 16: rd(n + 4)
        arrive(a, C_A)
        lwait(a, C_A, 8 + 8 * hf)
    stamp(a, 8)
    srd(a, 84, P_OUT, 2048 * 896)
    a("v_mul_u32_u24 v10, 896, v3")
    a("v_lshl_add_u32 v10, v4, 3, v10")
    a(f"s_add_u32 s73, s74, s{S_TI}")
    a(f"s_mul_i32 s73, s73, {32 * 896}")
    a("s_lshl_b32 s65, s71, 7")
    a("s_add_u32 s73, s73, s65")
    a(f"s_lshl_b32 s65, s{S_CI}, 6")
    a("s_add_u32 s73, s73, s65")
    a(f"s_lshl_b32 s64, s74, 15")
    a(f"s_lshl_b32 s76, s{S_W4}, 14")
    a("s_add_u32 s75, s64, s76")
    a(f"s_add_u32 s75, s75, {WS_O + 0x200000}")
    a(f"s_lshl_b32 s64, s{S_TI}, 15")
    a(f"s_add_u32 s64, s64, {L_OB}")
    a("v_add_u32 v13, s64, v2")
    poll(a, ST_OB, PA5, T, 2, 16, 0)
    stamp(a, 9)
    for g in range(4):
        a(f"s_add_u32 s64, s75, {g * 4096}")
        a(f"s_add_u32 m0, s76, {L_OB + g * 4096}")
        for n in range(4): a(f"buffer_load_dwordx4 v2, s[16:19], s64 offen offset:{n*1024}{SC} lds")
    a("s_waitcnt vmcnt(0)")
    arrive(a, C_B)
    lwait(a, C_B, 4)
    stamp(a, 10)
    OB = 48
    for k in range(12): a.ds(f"ds_read_b128 {vr(OB+4*k,4)}, v13 offset:{k*1024}", f"o{k}")
    for k in range(32):
        a.wait_lg(f"o{k}")
        a(f"v_mfma_f32_32x32x16_bf16 {vr(ACC2,16)}, {vr(WOB+4*k,4)}, {vr(OB+4*(k%16),4)}, {vr(ACC2,16)}")
        if k + 12 < 32: a.ds(f"ds_read_b128 {vr(OB+4*((k+12)%16),4)}, v13 offset:{(k+12)*1024}", f"o{k+12}")
    pack16(a, 24, ACC2)
    for q in range(4): a(f"buffer_store_dwordx2 {vr(24+2*q,2)}, v10, s[84:87], s73 offen offset:{16*q}")
    a(f"s_add_u32 s60, s{S_ID}, s{S_W4}")
    a("s_cmp_lg_u32 s60, 0")
    a("s_cbranch_scc1 L_fin")
    a("v_mov_b32 v12, 0")
    a(f"v_mov_b32 v13, s{S_TAG}")
    a(f"s_mov_b32 s60, {WS_TAG}")
    a("s_mov_b64 exec, 1")
    a("buffer_store_dword v13, v12, s[16:19], s60 offen")
    a("s_mov_b64 exec, -1")
    a.label("L_fin")
    if STAMPS:
        a("s_waitcnt vmcnt(0)")
        stamp(a, 11)
        a(f"s_cmp_lg_u32 s{S_W4}, 0")
        a(f"s_cbranch_scc1 {END}")
        a(f"s_lshr_b32 s60, s{S_WAVE}, 2")
        a("s_lshl_b32 s60, s60, 16")
        a("s_lshl_b32 s61, s2, 8")
        a("s_add_u32 s60, s60, s61")
        a(f"s_add_u32 s60, s60, 0x8000000")
        a("v_lshlrev_b32 v12, 2, v0")
        a(f"buffer_store_dword v{V_ST}, v12, s[16:19], s60 offen")
    a.label(END)
    a("s_endpgm")
    return a.L

def build(path):
    ref = open(f"cdna_kernels/{NAME}.s.ref").read().split("\n")
    head = [l for l in ref if l.startswith(";") and "@launch" not in l]
    name = NAME + "_kernel"
    body = pad_hazards(kernel())
    out = head + [f"; @launch grid=(256,1,1) block=(512,1,1) lds={LDS_SIZE}", '.amdgcn_target "amdgcn-amd-amdhsa--gfx950"', ".text",
                  f".globl {name}", ".p2align 8", f".type {name},@function", f"{name}:"] + body
    out += [f".set CODE_LAST, L_end - {name} - 64"]
    out += ['.section .rodata,"a"', ".p2align 6", f".amdhsa_kernel {name}", "  .amdhsa_next_free_vgpr 256", "  .amdhsa_next_free_sgpr 102",
            "  .amdhsa_accum_offset 256", "  .amdhsa_group_segment_fixed_size 0", "  .amdhsa_kernarg_size 104",
            "  .amdhsa_user_sgpr_count 2", "  .amdhsa_user_sgpr_kernarg_segment_ptr 1", "  .amdhsa_system_sgpr_workgroup_id_x 1",
            ".end_amdhsa_kernel"]
    open(path, "w").write("\n".join(out) + "\n")

if __name__ == "__main__":
    build(f"c3.s")
    STAMPS = True
    build(f"c3_st.s")
```
